```python
import torch

def _softmax(x, axis=-1):
    return torch.softmax(x, dim=axis)
def _gelu(x):
    return torch.nn.functional.gelu(x, approximate="tanh")
def _silu(x):
    return torch.nn.functional.silu(x)
def _sigmoid(x):
    return torch.sigmoid(x)
def _layernorm(x, axis=-1, eps=1e-5):
    m = x.mean(dim=axis, keepdim=True)
    v = x.var(dim=axis, keepdim=True, unbiased=False)
    return (x - m) / torch.sqrt(v + eps)
def _scatter_add(tgt, idx, src, axis=0):
    return tgt.clone().index_add_(axis, idx, src)
def _segment_sum(src, seg, n):
    out = torch.zeros((n,) + src.shape[1:], dtype=src.dtype)
    return out.index_add_(0, seg, src)
def _pad(x, pw):
    flat = tuple(v for pair in reversed(pw) for v in pair)
    return torch.nn.functional.pad(x, flat)

kernel_name = 'recurrent_scan__sliding_block_cached__swiglu_ffn__decode'

def setup_inputs():

    _w = (lambda a: (lambda t: t.to(torch.bfloat16) if t.is_floating_point() else t)(torch.as_tensor(a)))
    def _A_setup():
        B, Sq, D = 1, 1, 576
        Hq, Hkv, Sk, Dh = 32, 16, 16384, 128
        assert Hq % Hkv == 0, (Hq, Hkv)
        return {
            "x": _w((lambda *s: torch.randn(*s, dtype=torch.bfloat16) * 0.05)(B, Sq, D)),
            "k_cache": _w((lambda *s: torch.randn(*s, dtype=torch.bfloat16) * 1.6)(B, Hkv, Sk, Dh)),
            "v_cache": _w((lambda *s: torch.randn(*s, dtype=torch.bfloat16) * 0.2)(B, Hkv, Sk, Dh)),
            "wq": _w((lambda *s: torch.randn(*s, dtype=torch.bfloat16) * 1.6)(D, Hq * Dh) * (D ** -0.5)),
            "wo": _w((lambda *s: torch.randn(*s, dtype=torch.bfloat16) * 0.2)(Hq * Dh, D) * ((Hq * Dh) ** -0.5)),
        }
    _A_in = _A_setup()

    def _B_setup():
        B, S, D, F = 1, 1, 576, 4608
        return {
            "x": _w((lambda *s: torch.randn(*s, dtype=torch.bfloat16) * 0.05)(B, S, D)),
            "w_gate": _w((lambda *s: torch.randn(*s, dtype=torch.bfloat16) * 0.1)(D, F)),
            "w_up": _w((lambda *s: torch.randn(*s, dtype=torch.bfloat16) * 0.1)(D, F)),
            "w_down": _w((lambda *s: torch.randn(*s, dtype=torch.bfloat16) * 0.1)(F, D)),
        }
    _B_in = _B_setup()

    return {
        "A_x": _A_in["x"],
        "A_k_cache": _A_in["k_cache"],
        "A_v_cache": _A_in["v_cache"],
        "A_wq": _A_in["wq"],
        "A_wo": _A_in["wo"],
        "B_x": _B_in["x"],
        "B_w_gate": _B_in["w_gate"],
        "B_w_up": _B_in["w_up"],
        "B_w_down": _B_in["w_down"],
    }

def reference(A_x, A_k_cache, A_v_cache, A_wq, A_wo, B_x, B_w_gate, B_w_up, B_w_down):
    def _A_ref(x, k_cache, v_cache, wq, wo):
        B, Sq, D = x.shape
        Hq, Dh = 32, 128
        Hkv, Sk = k_cache.shape[1], k_cache.shape[2]
        W = min(4096, max(256, Sk // 4))
        rep = Hq // Hkv
        q = (lambda x, *d: x.permute(*d))((x @ wq).reshape(B, Sq, Hq, Dh), 0, 2, 1, 3)
        k = (lambda x, n, axis: torch.repeat_interleave(x, n, dim=axis))(k_cache[:, :, Sk - W:, :], rep, axis=1)
        v = (lambda x, n, axis: torch.repeat_interleave(x, n, dim=axis))(v_cache[:, :, Sk - W:, :], rep, axis=1)
        scores = torch.einsum("bhqd,bhkd->bhqk", q, k) * (Dh ** -0.5)
        p = _softmax(scores, axis=-1)
        o = torch.einsum("bhqk,bhkd->bhqd", p, v)
        return (lambda x, *d: x.permute(*d))(o, 0, 2, 1, 3).reshape(B, Sq, Hq * Dh) @ wo

    def _B_ref(x, w_gate, w_up, w_down):
        g = _silu(x @ w_gate)
        u = x @ w_up
        return (g * u) @ w_down

    x = A_x
    xn = _layernorm(x, axis=-1)
    s = _A_ref(xn, A_k_cache, A_v_cache, A_wq, A_wo)
    g = _silu(_B_ref(xn, B_w_gate, B_w_up, B_w_down))
    return x + s * g
```

```python
import re

_REG_RE = re.compile(r"^(-?)(abs\()?\|?([vsa])(\d+)\)?\|?$")
_RANGE_RE = re.compile(r"^(-?)([vsa])\[(\d+):(\d+)\]$")

TRANS = ("v_exp_f32", "v_log_f32", "v_rcp_f32", "v_rsq_f32", "v_sqrt_f32", "v_sin_f32", "v_cos_f32",
         "v_rcp_iflag_f32")


def parse_reg(tok):
    tok = tok.strip()
    if tok == "vcc":
        return [("vcc", 0)]
    if tok == "exec":
        return [("exec", 0)]
    if tok == "m0":
        return [("m0", 0)]
    if tok in ("vcc_lo", "vcc_hi"):
        return [("vcc", 0)]
    if tok in ("exec_lo", "exec_hi"):
        return [("exec", 0)]
    m = _REG_RE.match(tok)
    if m:
        return [(m.group(3), int(m.group(4)))]
    m = _RANGE_RE.match(tok)
    if m:
        return [(m.group(2), i) for i in range(int(m.group(3)), int(m.group(4)) + 1)]
    return []


def split_ops(s):
    s = s.strip()
    if not s:
        return [], []
    parts = []
    depth = 0
    cur = ""
    for ch in s:
        if ch in "[(":
            depth += 1
        if ch in "])":
            depth -= 1
        if ch == "," and depth == 0:
            parts.append(cur.strip())
            cur = ""
        else:
            cur += ch
    parts.append(cur.strip())
    last = parts[-1]
    toks = []
    depth = 0
    cur = ""
    for ch in last:
        if ch in "[(":
            depth += 1
        if ch in "])":
            depth -= 1
        if ch.isspace() and depth == 0:
            if cur:
                toks.append(cur)
            cur = ""
        else:
            cur += ch
    if cur:
        toks.append(cur)
    ops = parts[:-1] + toks[:1]
    mods = toks[1:]
    return ops, mods


class Ins:
    __slots__ = ("mn", "ops", "mods", "kind", "dst", "src", "states", "text", "flags")


NO_DST_SALU = ("s_cmp", "s_cbranch", "s_branch", "s_waitcnt", "s_barrier", "s_nop", "s_endpgm", "s_sleep",
               "s_setprio", "s_bitcmp", "s_setreg", "s_sendmsg")

def _is_store(mn):
    return "_store" in mn


def _is_atomic(mn):
    return "_atomic" in mn


class Asm:
    def __init__(self, check_wait=True):
        self.lines = []
        self.hist = []
        self.vm = []
        self.lgkm = []
        self.smem = set()
        self.smem_pending = False
        self.check_wait = check_wait
        self.n_ins = 0
        self.store_guard = []
        self.stats = {}

    def raw(self, text):
        self.lines.append(text)

    def comment(self, text):
        self.lines.append("    ; " + text)

    def nop(self, n_states):
        while n_states > 0:
            k = min(n_states, 16)
            self._emit_plain("s_nop %d" % (k - 1), states=k)
            n_states -= k

    def _emit_plain(self, text, states=1):
        self.lines.append("    " + text)
        i = Ins()
        i.mn = text.split()[0]
        i.kind = "misc"
        i.dst = []
        i.src = []
        i.states = states
        i.flags = ()
        self._push_hist(i)

    def _push_hist(self, i):
        self.hist.append(i)
        if len(self.hist) > 40:
            self.hist = self.hist[-40:]
        self.n_ins += 1

    def _parse(self, text):
        t = text.strip()
        sp = t.split(None, 1)
        mn = sp[0]
        rest = sp[1] if len(sp) > 1 else ""
        ops, mods = split_ops(rest)
        i = Ins()
        i.mn = mn
        i.ops = ops
        i.mods = mods
        i.text = t
        i.states = 1
        flags = set()
        dst = []
        src = []
        if mn.startswith("v_"):
            i.kind = "valu"
            if mn.startswith("v_mfma") or mn.startswith("v_smfmac"):
                raise NotImplementedError("mfma hazards not modelled")
            if mn in TRANS:
                flags.add("trans")
            if any(m.startswith(("row_", "quad_perm", "wave_")) for m in mods):
                flags.add("dpp")
            if any(m.startswith(("dst_sel", "src0_sel", "src1_sel")) for m in mods):
                flags.add("sdwa")
            if mn.startswith("v_permlane"):
                flags.add("permlane")
                dst = parse_reg(ops[0]) + parse_reg(ops[1])
                src = list(dst)
            elif mn.startswith("v_cmpx"):
                dst = parse_reg(ops[0]) + [("exec", 0)]
                for o in ops[1:]:
                    src += parse_reg(o)
            elif mn.startswith("v_readlane") or mn.startswith("v_readfirstlane"):
                flags.add("readlane")
                dst = parse_reg(ops[0])
                for o in ops[1:]:
                    src += parse_reg(o)
            elif mn.startswith("v_writelane"):
                flags.add("writelane")
                dst = parse_reg(ops[0])
                for o in ops:
                    src += parse_reg(o)
            elif re.match(r"v_(add|sub|subrev)_co_u32", mn) or mn.startswith("v_div_scale") or \
                    mn.startswith("v_mad_u64_u32") or mn.startswith("v_mad_i64_i32"):
                dst = parse_reg(ops[0]) + parse_reg(ops[1])
                for o in ops[2:]:
                    src += parse_reg(o)
            elif re.match(r"v_(addc|subb|subbrev)_co_u32", mn):
                dst = parse_reg(ops[0]) + parse_reg(ops[1])
                for o in ops[2:]:
                    src += parse_reg(o)
                flags.add("carryin")
            else:
                dst = parse_reg(ops[0]) if ops else []
                for o in ops[1:]:
                    src += parse_reg(o)
                if mn.startswith(("v_fmac", "v_dot2c", "v_pk_fmac", "v_mac")) or mn.startswith("v_dot4c") \
                        or mn.startswith("v_dot8c"):
                    src += dst
                if mn.startswith("v_div_fmas"):
                    src.append(("vcc", 0))
                    flags.add("div_fmas")
                if "dpp" in flags or "sdwa" in flags:
                    src += dst
            src.append(("exec", 0))
        elif mn.startswith(("buffer_", "global_", "flat_", "scratch_")):
            i.kind = "vmem"
            src.append(("exec", 0))
            if mn.startswith(("buffer_inv", "buffer_wbl2")):
                pass
            elif "lds" in mods or "_lds_" in mn:
                flags.add("ldsdma")
                src.append(("m0", 0))
                for o in ops:
                    src += parse_reg(o)
            elif _is_store(mn):
                flags.add("store")
                for o in ops:
                    src += parse_reg(o)
                if mn.endswith(("x3", "x4")):
                    flags.add("widestore")
                    i_data = ops[0] if mn.startswith("buffer_") else ops[1]
                    i.flags = flags
                    i.kind = "vmem"
                    flags.add(("data", tuple(parse_reg(i_data))))
            elif _is_atomic(mn):
                flags.add("atomic")
                for o in ops:
                    src += parse_reg(o)
                if "sc0" in mods:
                    d = ops[0] if mn.startswith("buffer_") else ops[0]
                    dst = parse_reg(d)
                    flags.add("load")
            else:
                flags.add("load")
                dst = parse_reg(ops[0])
                for o in ops[1:]:
                    src += parse_reg(o)
        elif mn.startswith("ds_"):
            i.kind = "ds"
            src.append(("exec", 0))
            if mn.startswith(("ds_write", "ds_add_u32", "ds_add_f32", "ds_max", "ds_min", "ds_or_b32", "ds_and_b32")) \
                    and "_rtn" not in mn:
                for o in ops:
                    src += parse_reg(o)
            else:
                dst = parse_reg(ops[0])
                for o in ops[1:]:
                    src += parse_reg(o)
                flags.add("load")
        elif mn.startswith(("s_load", "s_atomic", "s_memtime", "s_memrealtime", "s_buffer_load")):
            i.kind = "smem"
            dst = parse_reg(ops[0])
            for o in ops[1:]:
                src += parse_reg(o)
            if mn.startswith("s_atomic"):
                src += dst
        elif mn.startswith("s_"):
            i.kind = "salu"
            if mn.startswith(NO_DST_SALU):
                for o in ops:
                    src += parse_reg(o)
                if mn.startswith("s_nop"):
                    i.states = int(ops[0], 0) + 1
            else:
                dst = parse_reg(ops[0]) if ops else []
                for o in ops[1:]:
                    src += parse_reg(o)
                if "saveexec" in mn:
                    dst.append(("exec", 0))
                    src.append(("exec", 0))
                if mn.startswith("s_addk") or mn.startswith("s_mulk"):
                    src += dst
        else:
            raise ValueError("unknown instruction: " + text)
        i.dst = dst
        i.src = src
        i.flags = flags
        return i

    def _required_gap(self, prev, cur):
        need = 0
        pd = set(prev.dst)
        cs = set(cur.src)
        cd = set(cur.dst)
        if prev.kind == "valu":
            vg_w = {r for r in pd if r[0] in "va"}
            sg_w = {r for r in pd if r[0] in ("s", "vcc")}
            ex_w = ("exec", 0) in pd
            if cur.kind == "valu":
                if "dpp" in cur.flags:
                    if vg_w & cs:
                        need = max(need, 2)
                    if ex_w:
                        need = max(need, 5)
                if "permlane" in cur.flags:
                    if vg_w & cs:
                        need = max(need, 2)
                    if ex_w:
                        need = max(need, 4)
                if "readlane" in cur.flags or "writelane" in cur.flags:
                    if vg_w & cs:
                        need = max(need, 1)
                    if sg_w & cs:
                        need = max(need, 4)
                    if ex_w:
                        need = max(need, 4)
                if sg_w & cs:
                    need = max(need, 4 if "div_fmas" in cur.flags else 2)
                if ex_w and any(r == ("exec", 0) for r in cur.src[:-1]):
                    need = max(need, 2)
                if "trans" in prev.flags and "trans" not in cur.flags and (vg_w & (cs | cd)):
                    need = max(need, 1)
                if "sdwa" in prev.flags and (vg_w & (cs | cd)):
                    need = max(need, 1)
            elif cur.kind == "vmem":
                if sg_w & cs:
                    need = max(need, 5)
            elif cur.kind in ("salu", "smem"):
                if sg_w & cs:
                    need = max(need, 2)
            elif cur.kind == "ds":
                pass
        elif prev.kind == "salu":
            if ("m0", 0) in pd and (cur.kind == "vmem" and "ldsdma" in cur.flags or cur.mn.startswith("s_movrel")):
                need = max(need, 1)
        elif prev.kind == "vmem":
            if "widestore" in prev.flags:
                data = ()
                for f in prev.flags:
                    if isinstance(f, tuple) and f[0] == "data":
                        data = set(f[1])
                if data and (data & cd):
                    need = max(need, 2 if cur.kind == "valu" else 1)
        return need

    def _pad_for(self, cur):
        dist = 0
        worst = 0
        for prev in reversed(self.hist):
            g = self._required_gap(prev, cur)
            if g > dist:
                worst = max(worst, g - dist)
            dist += prev.states
            if dist >= 8:
                break
        if worst > 0:
            self.nop(worst)
            self.stats["hazard_nops"] = self.stats.get("hazard_nops", 0) + worst

    def close_hazards(self, extra=1):
        dist = extra
        worst = 0
        for prev in reversed(self.hist):
            g = 0
            if prev.kind == "valu":
                if any(r[0] in ("s", "vcc") for r in prev.dst):
                    g = 5
                elif ("exec", 0) in prev.dst:
                    g = 5
                elif prev.dst:
                    g = 2
            elif prev.kind == "salu":
                if ("m0", 0) in prev.dst:
                    g = 1
            elif prev.kind == "vmem" and "widestore" in prev.flags:
                g = 2
            if g > dist:
                worst = max(worst, g - dist)
            dist += prev.states
            if dist >= 8:
                break
        if worst > 0:
            self.nop(worst)

    def _need_waits(self, cur):
        touched = set(cur.src) | set(cur.dst)
        vm_n = None
        for idx in range(len(self.vm) - 1, -1, -1):
            if self.vm[idx]["dst"] & touched:
                vm_n = len(self.vm) - 1 - idx
                break
        lg_n = None
        if self.smem & touched:
            lg_n = 0
        else:
            for idx in range(len(self.lgkm) - 1, -1, -1):
                if self.lgkm[idx]["dst"] & touched:
                    lg_n = len(self.lgkm) - 1 - idx
                    break
            if lg_n is not None and self.smem:
                lg_n = 0
        if vm_n is not None or lg_n is not None:
            self.waitcnt(vm=vm_n, lgkm=lg_n, auto=True)

    def waitcnt(self, vm=None, lgkm=None, auto=False):
        parts = []
        if vm is not None:
            vm = min(vm, 63)
            parts.append("vmcnt(%d)" % vm)
            if vm < len(self.vm):
                self.vm = self.vm[len(self.vm) - vm:] if vm > 0 else []
        if lgkm is not None:
            lg = min(lgkm, 15)
            parts.append("lgkmcnt(%d)" % lg)
            if lg == 0:
                self.lgkm = []
                self.smem = set()
            else:
                if lg < len(self.lgkm):
                    self.lgkm = self.lgkm[len(self.lgkm) - lg:]
        if not parts:
            return
        self._emit_plain("s_waitcnt " + " ".join(parts))

    def wait_all(self):
        self.waitcnt(vm=0, lgkm=0)

    def forget_pending(self):
        self.vm = []
        self.lgkm = []
        self.smem = set()

    def pending_vm(self):
        return len(self.vm)

    def i(self, text, tag=None):
        if "\n" in text:
            for l in text.split("\n"):
                l = l.strip()
                if l:
                    self.i(l)
            return
        cur = self._parse(text)
        mn = cur.mn
        if mn.startswith(("s_branch", "s_cbranch", "s_endpgm", "s_setpc")):
            raise ValueError("use branch()/endpgm() for control flow")
        if mn == "s_waitcnt":
            vm = lg = None
            m = re.search(r"vmcnt\((\d+)\)", text)
            if m:
                vm = int(m.group(1))
            m = re.search(r"lgkmcnt\((\d+)\)", text)
            if m:
                lg = int(m.group(1))
            self.waitcnt(vm=vm, lgkm=lg)
            return
        if self.check_wait:
            self._need_waits(cur)
        self._pad_for(cur)
        self.lines.append("    " + cur.text)
        self._push_hist(cur)
        if cur.kind == "vmem":
            if mn.startswith(("buffer_inv", "buffer_wbl2")):
                self.vm.append({"dst": set(), "t": mn})
            else:
                d = set(cur.dst) if "load" in cur.flags else set()
                self.vm.append({"dst": d, "t": mn})
        elif cur.kind == "ds":
            d = set(cur.dst) if "load" in cur.flags else set()
            self.lgkm.append({"dst": d, "t": mn})
        elif cur.kind == "smem":
            self.smem |= set(cur.dst)

    def label(self, name):
        self.lines.append(name + ":")

    def branch(self, mn, target):
        self.close_hazards(extra=1)
        self.lines.append("    %s %s" % (mn, target))
        i = Ins()
        i.mn = mn
        i.kind = "misc"
        i.dst = []
        i.src = []
        i.states = 1
        i.flags = ()
        self._push_hist(i)

    def endpgm(self):
        self.lines.append("    s_endpgm")

    def text(self):
        return "\n".join(self.lines) + "\n"


def kernel_header(name):
    return (".globl {n}\n.p2align 8\n.type {n},@function\n{n}:".format(n=name))


def kernel_descriptor(name, vgpr, sgpr, accum=None, kernarg=96):
    if accum is None:
        accum = (vgpr + 3) // 4 * 4
    return """.amdhsa_kernel {n}
  .amdhsa_next_free_vgpr {v}
  .amdhsa_next_free_sgpr {s}
  .amdhsa_accum_offset {a}
  .amdhsa_group_segment_fixed_size 0
  .amdhsa_kernarg_size {k}
  .amdhsa_user_sgpr_count 2
  .amdhsa_user_sgpr_kernarg_segment_ptr 1
  .amdhsa_system_sgpr_workgroup_id_x 1
.end_amdhsa_kernel""".format(n=name, v=vgpr, s=sgpr, a=accum, k=kernarg)
```

```python
D = 576
HQ, HKV, DH = 32, 16, 128
SK, WIN = 16384, 4096
F = 4608

WS_EPOCH = 0
WS_XQ = 0x1000
WS_XF = 0x40000
WS_XO = 0x100000
WS_XOS = 0x180000
WS_XS = 0x190000
WS_XD = 0x1C0000
WS_STAMP = 0x200000
WS_BYTES = 0x400000

L_FLAGS = 0x0
LF_QREADY = 0
LF_ISSUE = 4
LF_ARRIVE = 8
LF_TVALID = 12
LF_TLO = 16
LF_THI = 20
LF_GISSUED = 24
LF_ATTDONE = 28
L_Q = 0x100
L_STATS = 0x400
L_PART = 0x800
L_SCR = 0x3000
L_SCR_STRIDE = 0xA00
NWAVES = 12
LDS_BYTES = L_SCR + NWAVES * L_SCR_STRIDE

LOG2E = 1.4426950408889634
SCALE = 128 ** -0.5
```

```python
import struct
import sys

sys.path.insert(0, "gen")
from asmgen import Asm, kernel_header, kernel_descriptor
from layout import *

KNAME = "recurrent_scan__sliding_block_cached__swiglu_ffn__decode"


def f32(x):
    return "0x%08x" % struct.unpack("<I", struct.pack("<f", x))[0]


S_X, S_K, S_V, S_WQ, S_WO, S_WG, S_WU, S_WD, S_OUT, S_WS = 8, 12, 16, 20, 24, 28, 32, 36, 40, 44
S_T = 48
S_SELLO, S_SELHI = 50, 51
S_M1, S_M0 = 52, 54
S_LO32 = 56
S_SPIN = 58
S_SCR = 60
S_TASK = 61
S_LWT = 62
S_MUL = 63
S_MASK = 64
S_TMP = 66


def srd(b):
    return "s[%d:%d]" % (b, b + 3)


def vr(b, n=1):
    return "v%d" % b if n == 1 else "v[%d:%d]" % (b, b + n - 1)


class Gen:
    def __init__(self, params):
        self.p = params
        self.a = Asm()
        self.lbl = 0

    def L(self, base):
        self.lbl += 1
        return "L_%s_%d" % (base, self.lbl)

    def bf16r(self, dst, src):
        a = self.a
        a.i("v_cvt_pk_bf16_f32 v%d, v%d, v%d" % (dst, src, src))
        a.i("v_lshlrev_b32 v%d, 16, v%d" % (dst, dst))

    def lds_wait_ge(self, off, val, vtmp, stmp):
        a = self.a
        lw, ld = self.L("lw"), self.L("lwd")
        a.i("v_mov_b32 v%d, 0" % (vtmp + 1))
        a.i("s_mov_b32 s%d, 0" % S_SPIN)
        a.label(lw)
        a.i("ds_read_b32 v%d, v%d offset:%d" % (vtmp, vtmp + 1, off))
        a.i("s_add_u32 s%d, s%d, 1" % (S_SPIN, S_SPIN))
        a.i("v_readfirstlane_b32 s%d, v%d" % (stmp, vtmp))
        a.i("s_cmp_ge_u32 s%d, %d" % (stmp, val))
        a.branch("s_cbranch_scc1", ld)
        a.i("s_sleep 1")
        a.i("s_cmp_lt_u32 s%d, 0x%x" % (S_SPIN, self.p["spin_lds"]))
        a.branch("s_cbranch_scc1", lw)
        a.label(ld)

    def lds_inc(self, off, vtmp):
        a = self.a
        a.i("v_mov_b32 v%d, 0" % vtmp)
        a.i("v_mov_b32 v%d, 1" % (vtmp + 1))
        a.i("s_mov_b64 exec, 1")
        a.i("ds_add_u32 v%d, v%d offset:%d" % (vtmp, vtmp + 1, off))
        a.i("s_mov_b64 exec, -1")

    def get_tag_from_lds(self, vtmp):
        a = self.a
        self.lds_wait_ge(LF_TVALID, 1, vtmp, S_LWT)
        a.i("v_mov_b32 v%d, 0" % (vtmp + 2))
        a.i("ds_read_b64 v[%d:%d], v%d offset:%d" % (vtmp, vtmp + 1, vtmp + 2, LF_TLO))
        a.i("v_readfirstlane_b32 s%d, v%d" % (S_T, vtmp))
        a.i("v_readfirstlane_b32 s%d, v%d" % (S_T + 1, vtmp + 1))

    def allreduce16_32(self, x, t, op):
        a = self.a
        a.i("v_mov_b32 v%d, v%d" % (t, x))
        a.i("v_permlane16_swap_b32 v%d, v%d" % (x, t))
        a.i("%s v%d, v%d, v%d" % (op, x, x, t))
        a.i("v_mov_b32 v%d, v%d" % (t, x))
        a.i("v_permlane32_swap_b32 v%d, v%d" % (x, t))
        a.i("%s v%d, v%d, v%d" % (op, x, x, t))

    def wave_allreduce_add(self, x, t):
        a = self.a
        a.i("v_add_f32_dpp v%d, v%d, v%d quad_perm:[1,0,3,2] row_mask:0xf bank_mask:0xf" % (x, x, x))
        a.i("v_add_f32_dpp v%d, v%d, v%d quad_perm:[2,3,0,1] row_mask:0xf bank_mask:0xf" % (x, x, x))
        a.i("v_add_f32_dpp v%d, v%d, v%d row_half_mirror row_mask:0xf bank_mask:0xf" % (x, x, x))
        a.i("v_add_f32_dpp v%d, v%d, v%d row_mirror row_mask:0xf bank_mask:0xf" % (x, x, x))
        self.allreduce16_32(x, t, "v_add_f32")

    def validate(self, regs, smask):
        a = self.a
        first = True
        for r in regs:
            if first:
                a.i("v_cmp_ne_u64 s[%d:%d], s[%d:%d], v[%d:%d]" % (smask, smask + 1, S_T, S_T + 1, r + 2, r + 3))
                first = False
            else:
                a.i("v_cmp_ne_u64 vcc, s[%d:%d], v[%d:%d]" % (S_T, S_T + 1, r + 2, r + 3))
                a.i("s_or_b64 s[%d:%d], s[%d:%d], vcc" % (smask, smask + 1, smask, smask + 1))

    def poll(self, issue_fn, regs, name):
        a = self.a
        lr, lo = self.L(name + "_r"), self.L(name + "_ok")
        smask = S_MASK
        a.i("s_mov_b32 s%d, 0" % S_SPIN)
        a.label(lr)
        issue_fn()
        a.i("s_add_u32 s%d, s%d, 1" % (S_SPIN, S_SPIN))
        a.waitcnt(vm=0)
        self.validate(regs, smask)
        a.i("s_cmp_eq_u64 s[%d:%d], 0" % (smask, smask + 1))
        a.branch("s_cbranch_scc1", lo)
        a.i("s_cmp_lt_u32 s%d, 0x%x" % (S_SPIN, self.p["spin_glb"]))
        a.branch("s_cbranch_scc1", lr)
        a.label(lo)

    def prologue(self):
        a = self.a
        for (s, off) in ((S_X, 0), (S_K, 8), (S_V, 16), (S_WQ, 24), (S_WO, 32), (S_WG, 48), (S_WU, 56), (S_WD, 64),
                         (S_OUT, 72), (S_WS, 88)):
            a.i("s_load_dwordx2 s[%d:%d], s[0:1], %d" % (s, s + 1, off))
        a.i("v_lshrrev_b32 v2, 6, v0")
        a.i("v_and_b32 v1, 63, v0")
        a.i("v_readfirstlane_b32 s3, v2")
        a.i("s_cmp_ge_u32 s2, 256")
        a.branch("s_cbranch_scc1", "L_exit_" + self.kn)
        for (s, n) in ((S_X, 1152), (S_K, 67108864), (S_V, 67108864), (S_WQ, 4718592), (S_WO, 4718592),
                       (S_WG, 5308416), (S_WU, 5308416), (S_WD, 5308416), (S_OUT, 1152), (S_WS, WS_BYTES)):
            a.i("s_mov_b32 s%d, 0x%x" % (s + 2, n))
            a.i("s_mov_b32 s%d, 0x20000" % (s + 3))
        a.i("s_mov_b32 s%d, 0x05040100" % S_SELLO)
        a.i("s_mov_b32 s%d, 0x07060302" % S_SELHI)
        a.i("s_mov_b32 s%d, 0xcccccccc" % S_M1)
        a.i("s_mov_b32 s%d, 0xcccccccc" % (S_M1 + 1))
        a.i("s_mov_b32 s%d, 0xaaaaaaaa" % S_M0)
        a.i("s_mov_b32 s%d, 0xaaaaaaaa" % (S_M0 + 1))
        a.i("s_mov_b32 s%d, -1" % S_LO32)
        a.i("s_mov_b32 s%d, 0" % (S_LO32 + 1))
        l0 = self.L("nz")
        a.i("s_cmp_lg_u32 s3, 0")
        a.branch("s_cbranch_scc1", l0)
        a.i("v_mov_b32 v3, 0")
        a.i("v_lshlrev_b32 v4, 2, v1")
        a.i("ds_write_b32 v4, v3")
        a.label(l0)
        a.waitcnt(lgkm=0)
        a.i("s_barrier")

    def ln_issue(self, vx):
        a = self.a
        a.i("v_lshlrev_b32 v%d, 2, v1" % (vx + 5))
        for j in range(5):
            a.i("buffer_load_dword v%d, v%d, %s, 0 offen offset:%d" % (vx + j, vx + 5, srd(S_X), j * 256))

    def ln_compute(self, vx, vt, s_scr):
        a = self.a
        lo = [vt + 2 * j for j in range(5)]
        hi = [vt + 2 * j + 1 for j in range(5)]
        for j in range(5):
            a.i("v_lshlrev_b32 v%d, 16, v%d" % (lo[j], vx + j))
            a.i("v_and_b32 v%d, 0xffff0000, v%d" % (hi[j], vx + j))
        sm, t, mean = vt + 10, vt + 11, vt + 12
        a.i("v_add_f32 v%d, v%d, v%d" % (sm, lo[0], hi[0]))
        for j in range(1, 5):
            a.i("v_add_f32 v%d, v%d, v%d" % (sm, sm, lo[j]))
            a.i("v_add_f32 v%d, v%d, v%d" % (sm, sm, hi[j]))
        self.wave_allreduce_add(sm, t)
        a.i("v_mul_f32 v%d, %s, v%d" % (mean, f32(1.0 / 576.0), sm))
        sq, d = vt + 13, vt + 14
        a.i("v_mov_b32 v%d, 0" % sq)
        for j in range(5):
            for r in (lo[j], hi[j]):
                a.i("v_sub_f32 v%d, v%d, v%d" % (d, r, mean))
                if j == 4:
                    a.i("v_cndmask_b32 v%d, 0, v%d, s[%d:%d]" % (d, d, S_LO32, S_LO32 + 1))
                a.i("v_fmac_f32 v%d, v%d, v%d" % (sq, d, d))
        self.wave_allreduce_add(sq, t)
        a.i("v_mul_f32 v%d, %s, v%d" % (sq, f32(1.0 / 576.0), sq))
        mb, vb = vt + 15, vt + 16
        self.bf16r(mb, mean)
        self.bf16r(vb, sq)
        a.i("v_add_f32 v%d, %s, v%d" % (vb, f32(1e-5), vb))
        self.bf16r(vb, vb)
        a.i("v_sqrt_f32 v%d, v%d" % (vb, vb))
        self.bf16r(vb, vb)
        inv = vt + 17
        a.i("v_rcp_f32 v%d, v%d" % (inv, vb))
        ad, t2 = vt + 18, vt + 19
        a.i("v_lshrrev_b32 v%d, 3, v1" % ad)
        a.i("v_lshlrev_b32 v%d, 5, v%d" % (ad, ad))
        a.i("v_and_b32 v%d, 3, v1" % t2)
        a.i("v_lshl_add_u32 v%d, v%d, 3, v%d" % (ad, t2, ad))
        a.i("v_bfe_u32 v%d, v1, 2, 1" % t2)
        a.i("v_lshl_add_u32 v%d, v%d, 1, v%d" % (ad, t2, ad))
        a.i("v_add_u32 v%d, s%d, v%d" % (ad, s_scr, ad))
        q0, e = vt + 20, vt + 21
        for j in range(5):
            for r in (lo[j], hi[j]):
                a.i("v_sub_f32 v%d, v%d, v%d" % (r, r, mb))
            a.i("v_cvt_pk_bf16_f32 v%d, v%d, v%d" % (t, lo[j], hi[j]))
            a.i("v_lshlrev_b32 v%d, 16, v%d" % (lo[j], t))
            a.i("v_and_b32 v%d, 0xffff0000, v%d" % (hi[j], t))
            for r in (lo[j], hi[j]):
                a.i("v_mul_f32 v%d, v%d, v%d" % (q0, r, inv))
                a.i("v_fma_f32 v%d, -v%d, v%d, v%d" % (e, q0, vb, r))
                a.i("v_fma_f32 v%d, v%d, v%d, v%d" % (r, e, inv, q0))
            a.i("v_cvt_pk_bf16_f32 v%d, v%d, v%d" % (t, lo[j], hi[j]))
            a.i("ds_write_b16 v%d, v%d offset:%d" % (ad, t, j * 256))
            a.i("ds_write_b16_d16_hi v%d, v%d offset:%d" % (ad, t, j * 256 + 4))

    def mv_voff(self, dst, pitch):
        a = self.a
        a.i("v_lshrrev_b32 v%d, 3, v1" % dst)
        a.i("s_mov_b32 s%d, %d" % (S_MUL, pitch))
        a.i("v_mul_lo_u32 v%d, v%d, s%d" % (dst, dst, S_MUL))
        a.i("v_and_b32 v%d, 7, v1" % (dst + 1))
        a.i("v_lshl_add_u32 v%d, v%d, 4, v%d" % (dst, dst + 1, dst))

    def mv_issue(self, s_srd, s_base, pitch, nload, W, voff, window=None):
        a = self.a
        for i in range(nload):
            if window is not None and i >= window:
                a.waitcnt(vm=window - 1)
            a.i("buffer_load_dwordx4 %s, v%d, %s, s%d offen nt" % (vr(W + 4 * i, 4), voff, srd(s_srd), s_base))
            if i + 1 < nload:
                a.i("s_add_u32 s%d, s%d, %d" % (s_base, s_base, 8 * pitch))

    def mv_perm(self, nload, W, tmp):
        a = self.a
        for p in range(nload // 2):
            for t in range(4):
                A = W + 8 * p + t
                B = W + 8 * p + 4 + t
                a.i("v_perm_b32 v%d, v%d, v%d, s%d" % (tmp, B, A, S_SELLO))
                a.i("v_perm_b32 v%d, v%d, v%d, s%d" % (B, B, A, S_SELHI))
                a.i("v_mov_b32 v%d, v%d" % (A, tmp))

    def mv_read_apairs(self, npair, ap, s_addr_base, vtmp):
        a = self.a
        a.i("v_lshrrev_b32 v%d, 3, v1" % vtmp)
        a.i("v_lshlrev_b32 v%d, 2, v%d" % (vtmp, vtmp))
        a.i("v_add_u32 v%d, s%d, v%d" % (vtmp, s_addr_base, vtmp))
        for p in range(npair):
            a.i("ds_read_b32 v%d, v%d offset:%d" % (ap + p, vtmp, p * 32))

    def mv_dot(self, nload, W, ap, acc):
        a = self.a
        for p in range(nload // 2):
            for t in range(4):
                A = W + 8 * p + t
                B = W + 8 * p + 4 + t
                if p == 0:
                    a.i("v_dot2_f32_bf16 v%d, v%d, v%d, 0" % (acc + 2 * t, A, ap))
                    a.i("v_dot2_f32_bf16 v%d, v%d, v%d, 0" % (acc + 2 * t + 1, B, ap))
                else:
                    a.i("v_dot2c_f32_bf16 v%d, v%d, v%d" % (acc + 2 * t, A, ap + p))
                    a.i("v_dot2c_f32_bf16 v%d, v%d, v%d" % (acc + 2 * t + 1, B, ap + p))

    def mv_reduce_publish(self, acc, s_off, vtmp):
        a = self.a
        for k in range(4):
            a.i("v_permlane32_swap_b32 v%d, v%d" % (acc + k, acc + k + 4))
        for k in range(4):
            a.i("v_add_f32 v%d, v%d, v%d" % (acc + k, acc + k, acc + k + 4))
        for k in range(2):
            a.i("v_permlane16_swap_b32 v%d, v%d" % (acc + k, acc + k + 2))
        for k in range(2):
            a.i("v_add_f32 v%d, v%d, v%d" % (acc + k, acc + k, acc + k + 2))
        a.i("v_add_f32_dpp v%d, v%d, v%d row_ror:8 row_mask:0xf bank_mask:0x3" % (acc, acc, acc))
        a.i("v_add_f32_dpp v%d, v%d, v%d row_ror:8 row_mask:0xf bank_mask:0xc" % (acc, acc + 1, acc + 1))
        g = vtmp
        a.i("v_mov_b32 v%d, v%d" % (g, acc))
        a.i("v_mov_b32_dpp v%d, v%d row_ror:8 row_mask:0xf bank_mask:0xf" % (g + 1, acc))
        a.i("v_mov_b32 v%d, s%d" % (g + 2, S_T))
        a.i("v_mov_b32 v%d, s%d" % (g + 3, S_T + 1))
        ad, t = g + 4, g + 5
        a.i("v_and_b32 v%d, 7, v1" % ad)
        a.i("v_lshlrev_b32 v%d, 6, v%d" % (ad, ad))
        a.i("v_lshrrev_b32 v%d, 5, v1" % t)
        a.i("v_lshl_add_u32 v%d, v%d, 5, v%d" % (ad, t, ad))
        a.i("v_bfe_u32 v%d, v1, 4, 1" % t)
        a.i("v_lshl_add_u32 v%d, v%d, 4, v%d" % (ad, t, ad))
        a.i("s_mov_b32 exec_lo, 0x00ff00ff")
        a.i("s_mov_b32 exec_hi, 0x00ff00ff")
        a.i("buffer_store_dwordx4 %s, v%d, %s, s%d offen sc1" % (vr(g, 4), ad, srd(S_WS), s_off))
        a.i("s_mov_b64 exec, -1")

    def scratch_base(self, sdst):
        a = self.a
        a.i("s_mul_i32 s%d, s3, %d" % (sdst, L_SCR_STRIDE))
        a.i("s_add_u32 s%d, s%d, %d" % (sdst, sdst, L_SCR))

    def div9(self, q, r, x):
        a = self.a
        a.i("s_mul_i32 s%d, s%d, 7282" % (q, x))
        a.i("s_lshr_b32 s%d, s%d, 16" % (q, q))
        a.i("s_mul_i32 s%d, s%d, 9" % (r, q))
        a.i("s_sub_u32 s%d, s%d, s%d" % (r, x, r))

    VW = 8
    VP = 80
    VACC = 152
    VAP = 160

    def tag_acquire_issue(self, ve):
        a = self.a
        a.i("v_mov_b32 v%d, 0" % (ve + 2))
        a.i("buffer_load_dwordx2 v[%d:%d], v%d, %s, 0 offen offset:%d sc1" % (ve, ve + 1, ve + 2, srd(S_WS), WS_EPOCH))

    def tag_acquire_finish(self, ve):
        a = self.a
        a.i("v_add_co_u32 v%d, vcc, 1, v%d" % (ve, ve))
        a.i("v_addc_co_u32 v%d, vcc, 0, v%d, vcc" % (ve + 1, ve + 1))
        a.i("v_readfirstlane_b32 s%d, v%d" % (S_T, ve))
        a.i("v_readfirstlane_b32 s%d, v%d" % (S_T + 1, ve + 1))
        a.i("v_mov_b32 v%d, 0" % (ve + 2))
        a.i("ds_write_b64 v%d, v[%d:%d] offset:%d" % (ve + 2, ve, ve + 1, LF_TLO))
        a.waitcnt(lgkm=0)
        a.i("v_mov_b32 v%d, 1" % (ve + 3))
        a.i("ds_write_b32 v%d, v%d offset:%d" % (ve + 2, ve + 3, LF_TVALID))

    def q_task(self):
        a = self.a
        W, VP, ACC = self.VW, self.VP, self.VACC
        sb, sscr, so = S_TMP, S_SCR, S_TMP + 2
        ve = VP + 60
        self.tag_acquire_issue(ve)
        vx = VP + 40
        self.ln_issue(vx)
        a.i("s_and_b32 s%d, s2, 3" % sb)
        a.i("s_lshr_b32 s%d, s2, 4" % so)
        a.i("s_lshl_b32 s%d, s%d, 2" % (so, so))
        a.i("s_add_u32 s%d, s%d, s%d" % (so, so, sb))
        a.i("s_lshl_b32 s%d, s%d, 7" % (sb, so))
        a.i("s_bfe_u32 s%d, s2, 0x20002" % (so + 1))
        a.i("s_mul_i32 s%d, s%d, %d" % (so + 2, so + 1, 144 * 8192))
        a.i("s_add_u32 s%d, s%d, s%d" % (sb, sb, so + 2))
        voff = VP + 50
        self.mv_voff(voff, 8192)
        self.mv_issue(S_WQ, sb, 8192, 18, W, voff)
        self.tag_acquire_finish(ve)
        self.scratch_base(sscr)
        self.ln_compute(vx, VP, sscr)
        a.i("s_mul_i32 s%d, s%d, %d" % (so + 2, so + 1, 9 * 32))
        a.i("s_add_u32 s%d, s%d, s%d" % (so + 2, so + 2, sscr))
        ap = VP + 24
        self.mv_read_apairs(9, ap, so + 2, VP + 34)
        self.mv_perm(18, W, VP + 35)
        self.mv_dot(18, W, ap, ACC)
        a.i("s_lshl_b32 s%d, s%d, 2" % (so, so))
        a.i("s_add_u32 s%d, s%d, s%d" % (so, so, so + 1))
        a.i("s_lshl_b32 s%d, s%d, 9" % (so, so))
        a.i("s_add_u32 s%d, s%d, 0x%x" % (so, so, WS_XQ))
        self.mv_reduce_publish(ACC, so, VP + 36)

    def x1_control(self):
        a = self.a
        VP = self.VP
        sb = S_TMP
        a.i("s_lshr_b32 s%d, s2, 4" % sb)
        a.i("s_lshl_b32 s%d, s%d, 13" % (sb, sb))
        a.i("s_add_u32 s%d, s%d, 0x%x" % (sb, sb, WS_XQ))
        a.i("s_add_u32 s%d, s%d, 4096" % (sb + 1, sb))
        vo = VP + 40
        a.i("v_lshlrev_b32 v%d, 4, v1" % vo)
        regs = [VP + 4 * j for j in range(8)]

        def issue():
            for j in range(8):
                a.i("buffer_load_dwordx4 %s, v%d, %s, s%d offen offset:%d sc1" % (
                    vr(regs[j], 4), vo, srd(S_WS), sb + (j >> 2), (j & 3) * 1024))
        self.poll(issue, regs, "x1")
        t = VP + 41
        for c in range(4):
            A, B = regs[2 * c], regs[2 * c + 1]
            for e in range(2):
                a.i("v_add_f32 v%d, v%d, v%d" % (A + e, A + e, B + e))
            for e in range(2):
                a.i("v_mov_b32 v%d, v%d" % (t + e, A + e))
                a.i("v_permlane32_swap_b32 v%d, v%d" % (A + e, t + e))
                a.i("v_add_f32 v%d, v%d, v%d" % (A + e, A + e, t + e))
            a.i("v_cvt_pk_bf16_f32 v%d, v%d, v%d" % (A, A, A + 1))
        ad = VP + 44
        a.i("v_and_b32 v%d, 31, v1" % ad)
        a.i("v_lshlrev_b32 v%d, 2, v%d" % (ad, ad))
        for c in range(4):
            a.i("ds_write_b32 v%d, v%d offset:%d" % (ad, regs[2 * c], L_Q + c * 128))
        a.waitcnt(lgkm=0)
        a.i("v_mov_b32 v%d, 0" % ad)
        a.i("v_mov_b32 v%d, 1" % (ad + 1))
        a.i("ds_write_b32 v%d, v%d offset:%d" % (ad, ad + 1, LF_QREADY))

    def g_task(self, s_g, gated):
        a = self.a
        W, VP, ACC = self.VW, self.VP, self.VACC
        sb, so, sscr = S_TMP + 4, S_TMP + 5, S_SCR
        a.i("s_and_b32 s%d, s%d, 3" % (so + 1, s_g))
        a.i("s_lshr_b32 s%d, s%d, 4" % (so + 2, s_g))
        a.i("s_bfe_u32 s%d, s%d, 0x10002" % (so + 3, s_g))
        a.i("s_lshl_b32 s%d, s%d, 1" % (sb, so + 2))
        a.i("s_add_u32 s%d, s%d, s%d" % (sb, sb, so + 3))
        a.i("s_lshl_b32 s%d, s%d, 7" % (sb, sb))
        a.i("s_mul_i32 s%d, s%d, %d" % (so + 4, so + 1, 144 * 9216))
        a.i("s_add_u32 s%d, s%d, s%d" % (sb, sb, so + 4))
        voff = VP + 50
        self.mv_voff(voff, 9216)
        a.i("s_mul_i32 s%d, s%d, %d" % (so + 4, so + 1, 9 * 32))
        a.i("s_add_u32 s%d, s%d, s%d" % (so + 4, so + 4, sscr))
        ap = VP + 24
        self.mv_read_apairs(9, ap, so + 4, VP + 34)
        if gated:
            self.lds_wait_ge(LF_ISSUE, 8, VP + 52, S_LWT)
        lu, ld = self.L("gup"), self.L("gdn")
        a.i("s_bitcmp1_b32 s%d, 3" % s_g)
        a.branch("s_cbranch_scc1", lu)
        pre = list(a.vm)
        self.mv_issue(S_WG, sb, 9216, 18, W, voff, self.p["win_g"])
        a.branch("s_branch", ld)
        a.label(lu)
        a.vm = pre
        self.mv_issue(S_WU, sb, 9216, 18, W, voff, self.p["win_g"])
        a.label(ld)
        if gated:
            self.lds_inc(LF_GISSUED, VP + 52)
        self.mv_perm(18, W, VP + 35)
        self.mv_dot(18, W, ap, ACC)
        a.i("s_lshl_b32 s%d, s%d, 9" % (so, s_g))
        a.i("s_add_u32 s%d, s%d, 0x%x" % (so, so, WS_XF))
        self.get_tag_from_lds(VP + 52)
        self.mv_reduce_publish(ACC, so, VP + 36)

    def act_pairs_to_scratch(self, vpk, s_scr, kreg, vtmp):
        a = self.a
        ad, t = vtmp, vtmp + 1
        a.i("v_lshrrev_b32 v%d, 3, v%d" % (ad, kreg))
        a.i("v_lshlrev_b32 v%d, 5, v%d" % (ad, ad))
        a.i("v_and_b32 v%d, 3, v%d" % (t, kreg))
        a.i("v_lshl_add_u32 v%d, v%d, 3, v%d" % (ad, t, ad))
        a.i("v_bfe_u32 v%d, v%d, 2, 1" % (t, kreg))
        a.i("v_lshl_add_u32 v%d, v%d, 1, v%d" % (ad, t, ad))
        a.i("v_add_u32 v%d, s%d, v%d" % (ad, s_scr, ad))
        a.i("ds_write_b16 v%d, v%d" % (ad, vpk))
        a.i("ds_write_b16_d16_hi v%d, v%d offset:4" % (ad, vpk))

    def silu(self, dst, x, t):
        a = self.a
        a.i("v_mul_f32 v%d, %s, v%d" % (t, f32(-LOG2E), x))
        a.i("v_exp_f32 v%d, v%d" % (t, t))
        a.i("v_add_f32 v%d, 1.0, v%d" % (t, t))
        a.i("v_rcp_f32 v%d, v%d" % (t, t))
        a.i("v_mul_f32 v%d, v%d, v%d" % (dst, x, t))

    def d_task(self, s_d, gated):
        a = self.a
        W, VP, ACC = self.VW, self.VP, self.VACC
        sq, sr, sb, so, sscr = S_TMP + 4, S_TMP + 5, S_TMP + 6, S_TMP + 8, S_SCR
        self.div9(sq, sr, s_d)
        a.i("s_mul_i32 s%d, s%d, %d" % (sb, sq, 128 * 1152))
        a.i("s_lshl_b32 s%d, s%d, 7" % (so, sr))
        a.i("s_add_u32 s%d, s%d, s%d" % (sb, sb, so))
        voff = VP + 66
        self.mv_voff(voff, 1152)
        if gated:
            self.lds_wait_ge(LF_GISSUED, 3, VP + 68, S_LWT)
        self.mv_issue(S_WD, sb, 1152, 16, W, voff)
        self.get_tag_from_lds(VP + 68)
        self.mv_perm(16, W, VP + 64)
        a.i("s_lshl_b32 s%d, s%d, 13" % (sb, sq))
        a.i("s_add_u32 s%d, s%d, 0x%x" % (sb, sb, WS_XF))
        a.i("s_add_u32 s%d, s%d, 4096" % (sb + 1, sb))
        vo = VP + 65
        a.i("v_lshlrev_b32 v%d, 4, v1" % vo)
        regs = [VP + 4 * j for j in range(8)]

        def issue():
            for j in range(8):
                a.i("buffer_load_dwordx4 %s, v%d, %s, s%d offen offset:%d sc1" % (
                    vr(regs[j], 4), vo, srd(S_WS), sb + (j >> 2), (j & 3) * 1024))
        self.poll(issue, regs, "x1f")
        t = VP + 40
        for mc in range(4):
            A, B = regs[2 * mc], regs[2 * mc + 1]
            for e in range(2):
                a.i("v_add_f32 v%d, v%d, v%d" % (A + e, A + e, B + e))
            for e in range(2):
                a.i("v_mov_b32 v%d, v%d" % (t + e, A + e))
                a.i("v_permlane32_swap_b32 v%d, v%d" % (A + e, t + e))
                a.i("v_add_f32 v%d, v%d, v%d" % (A + e, A + e, t + e))
        kreg = VP + 44
        for cgl in range(2):
            Gt, Ut = regs[2 * cgl], regs[4 + 2 * cgl]
            for e in range(2):
                self.bf16r(Gt + e, Gt + e)
                self.bf16r(Ut + e, Ut + e)
                self.silu(Gt + e, Gt + e, t)
                self.bf16r(Gt + e, Gt + e)
                a.i("v_mul_f32 v%d, v%d, v%d" % (Gt + e, Gt + e, Ut + e))
            a.i("v_cvt_pk_bf16_f32 v%d, v%d, v%d" % (Gt, Gt, Gt + 1))
            a.i("v_and_b32 v%d, 31, v1" % kreg)
            if cgl:
                a.i("v_add_u32 v%d, 32, v%d" % (kreg, kreg))
            self.act_pairs_to_scratch(Gt, sscr, kreg, VP + 46)
        ap = VP + 48
        self.mv_read_apairs(8, ap, sscr, VP + 46)
        self.mv_dot(16, W, ap, ACC)
        a.i("s_mul_i32 s%d, s%d, 36" % (so, sr))
        a.i("s_add_u32 s%d, s%d, s%d" % (so, so, sq))
        a.i("s_lshl_b32 s%d, s%d, 9" % (so, so))
        a.i("s_add_u32 s%d, s%d, 0x%x" % (so, so, WS_XD))
        self.mv_reduce_publish(ACC, so, VP + 56)

    def e_task(self, s_e, gated):
        a = self.a
        W, VP, ACC = self.VW, self.VP, self.VACC
        sq, sr, sb, so, sscr = S_TMP + 4, S_TMP + 5, S_TMP + 6, S_TMP + 8, S_SCR
        self.div9(sq, sr, s_e)
        a.i("s_mul_i32 s%d, s%d, %d" % (sb, sq, 128 * 1152))
        a.i("s_lshl_b32 s%d, s%d, 7" % (so, sr))
        a.i("s_add_u32 s%d, s%d, s%d" % (sb, sb, so))
        voff = VP + 60
        self.mv_voff(voff, 1152)
        if gated:
            self.lds_wait_ge(LF_GISSUED, 3, VP + 68, S_LWT)
        self.mv_issue(S_WO, sb, 1152, 16, W, voff)
        self.get_tag_from_lds(VP + 68)
        self.mv_perm(16, W, VP + 68)
        if gated:
            self.lds_wait_ge(LF_ATTDONE, 1, VP + 68, S_LWT)
        a.i("s_lshl_b32 s%d, s%d, 14" % (sb, sq))
        a.i("s_add_u32 s%d, s%d, 0x%x" % (sb, sb, WS_XO))
        for k in range(1, 4):
            a.i("s_add_u32 s%d, s%d, %d" % (sb + 10 + k, sb, 4096 * k))
        a.i("s_lshl_b32 s%d, s%d, 8" % (so, sq))
        a.i("s_add_u32 s%d, s%d, 0x%x" % (so, so, WS_XOS))
        vo, vs = VP + 68, VP + 69
        a.i("v_lshlrev_b32 v%d, 4, v1" % vo)
        a.i("v_and_b32 v%d, 15, v1" % vs)
        a.i("v_lshlrev_b32 v%d, 4, v%d" % (vs, vs))
        regs = [VP + 4 * j for j in range(16)]
        rst = VP + 64

        def issue():
            a.i("buffer_load_dwordx4 %s, v%d, %s, s%d offen sc1" % (vr(rst, 4), vs, srd(S_WS), so))
            for j in range(16):
                sreg = sb if j < 4 else sb + 10 + (j >> 2)
                a.i("buffer_load_dwordx4 %s, v%d, %s, s%d offen offset:%d sc1" % (
                    vr(regs[j], 4), vo, srd(S_WS), sreg, (j & 3) * 1024))
        self.poll(issue, [rst] + regs, "x2")
        M, w, t = VP + 70, VP + 71, rst + 2
        a.i("v_max_f32_dpp v%d, v%d, v%d row_ror:1 row_mask:0xf bank_mask:0xf" % (M, rst, rst))
        for k in (2, 4, 8):
            a.i("v_max_f32_dpp v%d, v%d, v%d row_ror:%d row_mask:0xf bank_mask:0xf" % (M, M, M, k))
        a.i("v_sub_f32 v%d, v%d, v%d" % (w, rst, M))
        a.i("v_mul_f32 v%d, %s, v%d" % (w, f32(LOG2E), w))
        a.i("v_exp_f32 v%d, v%d" % (w, w))
        a.i("v_mul_f32 v%d, v%d, v%d" % (t, w, rst + 1))
        for k in (1, 2, 4, 8):
            a.i("v_add_f32_dpp v%d, v%d, v%d row_ror:%d row_mask:0xf bank_mask:0xf" % (t, t, t, k))
        a.i("v_rcp_f32 v%d, v%d" % (t, t))
        a.i("v_mul_f32 v%d, v%d, v%d" % (w, w, t))
        o0, o1 = rst, rst + 1
        for j in range(16):
            if j == 0:
                a.i("v_mul_f32_dpp v%d, v%d, v%d row_newbcast:0 row_mask:0xf bank_mask:0xf" % (o0, w, regs[0]))
                a.i("v_mul_f32_dpp v%d, v%d, v%d row_newbcast:0 row_mask:0xf bank_mask:0xf" % (o1, w, regs[0] + 1))
            else:
                a.i("v_fmac_f32_dpp v%d, v%d, v%d row_newbcast:%d row_mask:0xf bank_mask:0xf" % (o0, w, regs[j], j))
                a.i("v_fmac_f32_dpp v%d, v%d, v%d row_newbcast:%d row_mask:0xf bank_mask:0xf" % (o1, w, regs[j] + 1, j))
        a.i("v_cvt_pk_bf16_f32 v%d, v%d, v%d" % (o0, o0, o1))
        self.act_pairs_to_scratch(o0, sscr, 1, VP + 70)
        ap = VP
        self.mv_read_apairs(8, ap, sscr, VP + 70)
        self.mv_dot(16, W, ap, ACC)
        a.i("s_lshl_b32 s%d, s%d, 5" % (so, sr))
        a.i("s_add_u32 s%d, s%d, s%d" % (so, so, sq))
        a.i("s_lshl_b32 s%d, s%d, 9" % (so, so))
        a.i("s_add_u32 s%d, s%d, 0x%x" % (so, so, WS_XS))
        self.mv_reduce_publish(ACC, so, VP + 8)

    def r_task(self, s_r, gated):
        a = self.a
        VP = self.VW
        sc, sd_, sx = S_TMP + 4, S_TMP + 5, S_TMP + 6
        a.i("s_lshr_b32 s%d, s%d, 2" % (sc, s_r))
        a.i("s_and_b32 s%d, s%d, 3" % (sd_, s_r))
        vx, vxo = VP + 60, VP + 61
        a.i("v_and_b32 v%d, 7, v1" % vxo)
        a.i("v_lshlrev_b32 v%d, 2, v%d" % (vxo, vxo))
        a.i("s_lshl_b32 s%d, s%d, 7" % (sx, sc))
        a.i("s_lshl_b32 s%d, s%d, 5" % (sx + 1, sd_))
        a.i("s_add_u32 s%d, s%d, s%d" % (sx, sx, sx + 1))
        a.i("buffer_load_dword v%d, v%d, %s, s%d offen" % (vx, vxo, srd(S_X), sx))
        self.get_tag_from_lds(VP + 64)
        if gated:
            self.lds_wait_ge(LF_ATTDONE, 1, VP + 64, S_LWT)
        ss, sf = S_TMP + 10, S_TMP + 16
        a.i("s_lshl_b32 s%d, s%d, 14" % (ss, sc))
        a.i("s_lshl_b32 s%d, s%d, 7" % (ss + 1, sd_))
        a.i("s_add_u32 s%d, s%d, s%d" % (ss, ss, ss + 1))
        a.i("s_add_u32 s%d, s%d, 0x%x" % (ss, ss, WS_XS))
        for k in range(1, 4):
            a.i("s_add_u32 s%d, s%d, %d" % (ss + k, ss, 4096 * k))
        a.i("s_mul_i32 s%d, s%d, %d" % (sf, sc, 36 * 512))
        a.i("s_lshl_b32 s%d, s%d, 7" % (sf + 1, sd_))
        a.i("s_add_u32 s%d, s%d, s%d" % (sf, sf, sf + 1))
        a.i("s_add_u32 s%d, s%d, 0x%x" % (sf, sf, WS_XD))
        for k in range(1, 5):
            a.i("s_add_u32 s%d, s%d, %d" % (sf + k, sf, 4096 * k))
        vo, vo2, t = VP + 62, VP + 63, VP + 64
        a.i("v_lshrrev_b32 v%d, 3, v1" % vo)
        a.i("v_and_b32 v%d, 3, v%d" % (vo2, vo))
        a.i("v_lshlrev_b32 v%d, 9, v%d" % (vo, vo))
        a.i("v_lshlrev_b32 v%d, 9, v%d" % (vo2, vo2))
        a.i("v_and_b32 v%d, 7, v1" % t)
        a.i("v_lshl_add_u32 v%d, v%d, 4, v%d" % (vo, t, vo))
        a.i("v_lshl_add_u32 v%d, v%d, 4, v%d" % (vo2, t, vo2))
        rs = [VP + 4 * j for j in range(4)]
        rf = [VP + 16 + 4 * j for j in range(5)]

        def issue():
            for j in range(4):
                a.i("buffer_load_dwordx4 %s, v%d, %s, s%d offen sc1" % (vr(rs[j], 4), vo, srd(S_WS), ss + j))
            for j in range(4):
                a.i("buffer_load_dwordx4 %s, v%d, %s, s%d offen sc1" % (vr(rf[j], 4), vo, srd(S_WS), sf + j))
            a.i("buffer_load_dwordx4 %s, v%d, %s, s%d offen sc1" % (vr(rf[4], 4), vo2, srd(S_WS), sf + 4))
        self.poll(issue, rs + rf, "x3")
        for e in range(2):
            a.i("v_cndmask_b32 v%d, 0, v%d, s[%d:%d]" % (rf[4] + e, rf[4] + e, S_LO32, S_LO32 + 1))
        for e in range(2):
            for j in range(1, 4):
                a.i("v_add_f32 v%d, v%d, v%d" % (rs[0] + e, rs[0] + e, rs[j] + e))
            for j in range(1, 5):
                a.i("v_add_f32 v%d, v%d, v%d" % (rf[0] + e, rf[0] + e, rf[j] + e))
        for r in (rs[0], rs[0] + 1, rf[0], rf[0] + 1):
            a.i("v_add_f32_dpp v%d, v%d, v%d row_ror:8 row_mask:0xf bank_mask:0xf" % (r, r, r))
            self.allreduce16_32(r, t, "v_add_f32")
        xl, xh = VP + 40, VP + 41
        a.i("v_lshlrev_b32 v%d, 16, v%d" % (xl, vx))
        a.i("v_and_b32 v%d, 0xffff0000, v%d" % (xh, vx))
        for e in range(2):
            s_, f_, x_ = rs[0] + e, rf[0] + e, (xl, xh)[e]
            self.bf16r(s_, s_)
            self.bf16r(f_, f_)
            self.silu(f_, f_, t)
            self.bf16r(f_, f_)
            a.i("v_mul_f32 v%d, v%d, v%d" % (s_, s_, f_))
            self.bf16r(s_, s_)
            a.i("v_add_f32 v%d, v%d, v%d" % (s_, x_, s_))
        a.i("v_cvt_pk_bf16_f32 v%d, v%d, v%d" % (rs[0], rs[0], rs[0] + 1))
        a.i("s_mov_b64 exec, 0xff")
        a.i("buffer_store_dword v%d, v%d, %s, s%d offen" % (rs[0], vxo, srd(S_OUT), sx))
        a.i("s_mov_b64 exec, -1")
        le = self.L("noep")
        a.i("s_cmp_lg_u32 s%d, 0" % s_r)
        a.branch("s_cbranch_scc1", le)
        a.i("v_mov_b32 v%d, s%d" % (VP + 44, S_T))
        a.i("v_mov_b32 v%d, s%d" % (VP + 45, S_T + 1))
        a.i("v_mov_b32 v%d, 0" % (VP + 46))
        a.i("s_mov_b64 exec, 1")
        a.i("buffer_store_dwordx2 v[%d:%d], v%d, %s, 0 offen offset:%d sc1" % (VP + 44, VP + 45, VP + 46, srd(S_WS), WS_EPOCH))
        a.i("s_mov_b64 exec, -1")
        a.label(le)

    def a_wave(self, gated):
        a = self.a
        WA = self.p["win_a"]
        KV = 8
        VQ = 72
        P = 80
        ACC = 96
        T = 112
        sb = S_TMP
        a.i("s_lshr_b32 s%d, s2, 4" % sb)
        a.i("s_lshl_b32 s%d, s%d, 22" % (sb, sb))
        a.i("s_and_b32 s%d, s2, 15" % (sb + 1))
        a.i("s_lshl_b32 s%d, s%d, 16" % (sb + 1, sb + 1))
        a.i("s_add_u32 s%d, s%d, s%d" % (sb, sb, sb + 1))
        a.i("s_lshl_b32 s%d, s3, 13" % (sb + 1))
        a.i("s_add_u32 s%d, s%d, s%d" % (sb, sb, sb + 1))
        a.i("s_add_u32 s%d, s%d, 0x300000" % (sb, sb))
        a.i("s_add_u32 s%d, s%d, 4096" % (sb + 1, sb))
        vo = T
        a.i("v_lshlrev_b32 v%d, 4, v1" % vo)

        def issue(n):
            s_ = S_K if n < 8 else S_V
            j = n & 7
            a.i("buffer_load_dwordx4 %s, v%d, %s, s%d offen offset:%d nt" % (
                vr(KV + 4 * n, 4), vo, srd(s_), sb + (j >> 2), (j & 3) * 1024))
        nxt = 0
        for n in range(WA):
            issue(n)
            nxt += 1
        for n in range(8):
            a.waitcnt(vm=WA - 1)
            issue(nxt)
            nxt += 1
        if gated:
            self.lds_wait_ge(LF_QREADY, 1, T + 2, S_LWT)
        a.i("v_and_b32 v%d, 15, v1" % (T + 2))
        a.i("v_lshlrev_b32 v%d, 4, v%d" % (T + 2, T + 2))
        a.i("ds_read_b128 %s, v%d offset:%d" % (vr(VQ, 4), T + 2, L_Q))
        a.i("ds_read_b128 %s, v%d offset:%d" % (vr(VQ + 4, 4), T + 2, L_Q + 256))

        def progress():
            nonlocal nxt
            if nxt < 16:
                a.waitcnt(vm=WA - 1)
                issue(nxt)
                nxt += 1
                if nxt == 16 and gated == "fused":
                    pass
        for j in range(8):
            for h in range(2):
                d = P + 2 * j + h
                a.i("v_dot2_f32_bf16 v%d, v%d, v%d, 0" % (d, KV + 4 * j, VQ + 4 * h))
                for t in range(1, 4):
                    a.i("v_dot2c_f32_bf16 v%d, v%d, v%d" % (d, KV + 4 * j + t, VQ + 4 * h + t))
        for u in range(8):
            A, B = P + u, P + u + 8
            a.i("v_add_f32_dpp v%d, v%d, v%d row_ror:8 row_mask:0xf bank_mask:0x3" % (A, A, A))
            a.i("v_add_f32_dpp v%d, v%d, v%d row_ror:8 row_mask:0xf bank_mask:0xc" % (A, B, B))
        for u in range(4):
            A, B = P + u, P + u + 4
            a.i("v_add_f32_dpp v%d, v%d, v%d row_shl:4 row_mask:0xf bank_mask:0x5" % (A, A, A))
            a.i("v_add_f32_dpp v%d, v%d, v%d row_shr:4 row_mask:0xf bank_mask:0xa" % (A, B, B))
        for u in range(2):
            A, B = P + u, P + u + 2
            a.i("v_add_f32_dpp v%d, v%d, v%d quad_perm:[2,3,0,1] row_mask:0xf bank_mask:0xf" % (A, A, A))
            a.i("v_add_f32_dpp v%d, v%d, v%d quad_perm:[2,3,0,1] row_mask:0xf bank_mask:0xf" % (B, B, B))
            a.i("v_cndmask_b32 v%d, v%d, v%d, s[%d:%d]" % (A, A, B, S_M1, S_M1 + 1))
        A, B = P, P + 1
        a.i("v_add_f32_dpp v%d, v%d, v%d quad_perm:[1,0,3,2] row_mask:0xf bank_mask:0xf" % (A, A, A))
        a.i("v_add_f32_dpp v%d, v%d, v%d quad_perm:[1,0,3,2] row_mask:0xf bank_mask:0xf" % (B, B, B))
        a.i("v_cndmask_b32 v%d, v%d, v%d, s[%d:%d]" % (A, A, B, S_M0, S_M0 + 1))
        s_ = P
        self.bf16r(s_, s_)
        a.i("v_mul_f32 v%d, %s, v%d" % (s_, f32(SCALE), s_))
        self.bf16r(s_, s_)
        m, t = P + 1, P + 2
        a.i("v_max_f32_dpp v%d, v%d, v%d quad_perm:[2,3,0,1] row_mask:0xf bank_mask:0xf" % (m, s_, s_))
        a.i("v_max_f32_dpp v%d, v%d, v%d row_ror:4 row_mask:0xf bank_mask:0xf" % (m, m, m))
        a.i("v_max_f32_dpp v%d, v%d, v%d row_ror:8 row_mask:0xf bank_mask:0xf" % (m, m, m))
        self.allreduce16_32(m, t, "v_max_f32")
        pp = P + 3
        a.i("v_sub_f32 v%d, v%d, v%d" % (pp, s_, m))
        a.i("v_mul_f32 v%d, %s, v%d" % (pp, f32(LOG2E), pp))
        a.i("v_exp_f32 v%d, v%d" % (pp, pp))
        ls = P + 4
        a.i("v_add_f32_dpp v%d, v%d, v%d quad_perm:[2,3,0,1] row_mask:0xf bank_mask:0xf" % (ls, pp, pp))
        a.i("v_add_f32_dpp v%d, v%d, v%d row_ror:4 row_mask:0xf bank_mask:0xf" % (ls, ls, ls))
        a.i("v_add_f32_dpp v%d, v%d, v%d row_ror:8 row_mask:0xf bank_mask:0xf" % (ls, ls, ls))
        self.allreduce16_32(ls, t, "v_add_f32")
        ulo, uhi = P + 6, P + 7
        for j in range(8):
            while nxt < 16 and nxt - WA <= 8 + j:
                a.waitcnt(vm=WA - 1)
                issue(nxt)
                nxt += 1
                if nxt == 16 and gated:
                    self.lds_inc(LF_ISSUE, T + 2)
            for t4 in range(4):
                vv = KV + 4 * (8 + j) + t4
                a.i("v_lshlrev_b32 v%d, 16, v%d" % (ulo, vv))
                a.i("v_and_b32 v%d, 0xffff0000, v%d" % (uhi, vv))
                for h in range(2):
                    for e, u in ((0, ulo), (1, uhi)):
                        d = ACC + 8 * h + 2 * t4 + e
                        if j == 0:
                            a.i("v_mul_f32_dpp v%d, v%d, v%d row_newbcast:%d row_mask:0xf bank_mask:0xf" % (d, pp, u, 2 * j + h))
                        else:
                            a.i("v_fmac_f32_dpp v%d, v%d, v%d row_newbcast:%d row_mask:0xf bank_mask:0xf" % (d, pp, u, 2 * j + h))
        for e in range(8):
            a.i("v_permlane32_swap_b32 v%d, v%d" % (ACC + e, ACC + 8 + e))
        for e in range(8):
            a.i("v_add_f32 v%d, v%d, v%d" % (ACC + e, ACC + e, ACC + 8 + e))
        for e in range(4):
            a.i("v_permlane16_swap_b32 v%d, v%d" % (ACC + e, ACC + 4 + e))
        for e in range(4):
            a.i("v_add_f32 v%d, v%d, v%d" % (ACC + e, ACC + e, ACC + 4 + e))
        ad, t2 = T + 4, T + 5
        a.i("v_lshrrev_b32 v%d, 5, v1" % ad)
        a.i("v_lshlrev_b32 v%d, 9, v%d" % (ad, ad))
        a.i("v_and_b32 v%d, 15, v1" % t2)
        a.i("v_lshl_add_u32 v%d, v%d, 5, v%d" % (ad, t2, ad))
        a.i("v_bfe_u32 v%d, v1, 4, 1" % t2)
        a.i("v_lshl_add_u32 v%d, v%d, 4, v%d" % (ad, t2, ad))
        a.i("s_lshl_b32 s%d, s3, 10" % (sb + 2))
        a.i("v_add_u32 v%d, s%d, v%d" % (T + 6, sb + 2, ad))
        a.i("ds_write_b128 v%d, %s offset:%d" % (T + 6, vr(ACC, 4), L_PART))
        a.i("v_mov_b32 v%d, v%d" % (T + 8, m))
        a.i("v_mov_b32 v%d, v%d" % (T + 9, ls))
        a.i("v_lshlrev_b32 v%d, 3, v1" % (T + 7))
        a.i("s_lshl_b32 s%d, s3, 4" % (sb + 2))
        a.i("v_add_u32 v%d, s%d, v%d" % (T + 7, sb + 2, T + 7))
        a.i("s_mov_b64 exec, 3")
        a.i("ds_write_b64 v%d, v[%d:%d] offset:%d" % (T + 7, T + 8, T + 9, L_STATS))
        a.i("s_mov_b64 exec, 1")
        a.waitcnt(lgkm=0)
        a.i("v_mov_b32 v%d, 0" % (T + 10))
        a.i("v_mov_b32 v%d, 1" % (T + 11))
        a.i("ds_add_rtn_u32 v%d, v%d, v%d offset:%d" % (T + 12, T + 10, T + 11, LF_ARRIVE))
        a.i("s_mov_b64 exec, -1")
        a.i("v_readfirstlane_b32 s%d, v%d" % (sb + 2, T + 12))
        a.i("s_cmp_lg_u32 s%d, 7" % (sb + 2))
        a.branch("s_cbranch_scc1", "L_exit_" + self.kn)
        self.get_tag_from_lds(T + 12)
        hs = T + 13
        a.i("v_lshrrev_b32 v%d, 5, v1" % hs)
        a.i("v_lshlrev_b32 v%d, 3, v%d" % (hs, hs))
        ST = KV
        for w_ in range(8):
            a.i("ds_read_b64 v[%d:%d], v%d offset:%d" % (ST + 2 * w_, ST + 2 * w_ + 1, hs, L_STATS + 16 * w_))
        PR = KV + 16
        for w_ in range(8):
            a.i("ds_read_b128 %s, v%d offset:%d" % (vr(PR + 4 * w_, 4), ad, L_PART + 1024 * w_))
        M, Ls = T + 14, T + 15
        a.i("v_max3_f32 v%d, v%d, v%d, v%d" % (M, ST, ST + 2, ST + 4))
        a.i("v_max3_f32 v%d, v%d, v%d, v%d" % (M, M, ST + 6, ST + 8))
        a.i("v_max3_f32 v%d, v%d, v%d, v%d" % (M, M, ST + 10, ST + 12))
        a.i("v_max_f32 v%d, v%d, v%d" % (M, M, ST + 14))
        for w_ in range(8):
            r = ST + 2 * w_
            a.i("v_sub_f32 v%d, v%d, v%d" % (r, r, M))
            a.i("v_mul_f32 v%d, %s, v%d" % (r, f32(LOG2E), r))
            a.i("v_exp_f32 v%d, v%d" % (r, r))
        a.i("v_mul_f32 v%d, v%d, v%d" % (Ls, ST, ST + 1))
        for w_ in range(1, 8):
            a.i("v_fmac_f32 v%d, v%d, v%d" % (Ls, ST + 2 * w_, ST + 2 * w_ + 1))
        G0 = T + 16
        for k in range(4):
            d = G0 + (k >> 1) * 4 + (k & 1)
            a.i("v_mul_f32 v%d, v%d, v%d" % (d, ST, PR + k))
            for w_ in range(1, 8):
                a.i("v_fmac_f32 v%d, v%d, v%d" % (d, ST + 2 * w_, PR + 4 * w_ + k))
        for gq in (G0, G0 + 4):
            a.i("v_mov_b32 v%d, s%d" % (gq + 2, S_T))
            a.i("v_mov_b32 v%d, s%d" % (gq + 3, S_T + 1))
        go, t3 = T + 24, T + 25
        a.i("v_lshrrev_b32 v%d, 5, v1" % go)
        a.i("v_lshlrev_b32 v%d, 14, v%d" % (go, go))
        a.i("v_and_b32 v%d, 15, v1" % t3)
        a.i("v_lshl_add_u32 v%d, v%d, 6, v%d" % (go, t3, go))
        a.i("v_bfe_u32 v%d, v1, 4, 1" % t3)
        a.i("v_lshl_add_u32 v%d, v%d, 5, v%d" % (go, t3, go))
        a.i("s_lshr_b32 s%d, s2, 4" % (sb + 2))
        a.i("s_lshl_b32 s%d, s%d, 5" % (sb + 2, sb + 2))
        a.i("s_and_b32 s%d, s2, 15" % (sb + 3))
        a.i("s_add_u32 s%d, s%d, s%d" % (sb + 2, sb + 2, sb + 3))
        a.i("s_lshl_b32 s%d, s%d, 10" % (sb + 3, sb + 2))
        a.i("s_add_u32 s%d, s%d, 0x%x" % (sb + 3, sb + 3, WS_XO))
        SG = T + 28
        a.i("v_mov_b32 v%d, v%d" % (SG, M))
        a.i("v_mov_b32 v%d, v%d" % (SG + 1, Ls))
        a.i("v_mov_b32 v%d, s%d" % (SG + 2, S_T))
        a.i("v_mov_b32 v%d, s%d" % (SG + 3, S_T + 1))
        a.i("buffer_store_dwordx4 %s, v%d, %s, s%d offen sc1" % (vr(G0, 4), go, srd(S_WS), sb + 3))
        a.i("buffer_store_dwordx4 %s, v%d, %s, s%d offen offset:16 sc1" % (vr(G0 + 4, 4), go, srd(S_WS), sb + 3))
        a.i("v_lshrrev_b32 v%d, 5, v1" % go)
        a.i("v_lshlrev_b32 v%d, 8, v%d" % (go, go))
        a.i("s_lshl_b32 s%d, s%d, 4" % (sb + 3, sb + 2))
        a.i("s_add_u32 s%d, s%d, 0x%x" % (sb + 3, sb + 3, WS_XOS))
        a.i("s_mov_b32 exec_lo, 1")
        a.i("s_mov_b32 exec_hi, 1")
        a.i("buffer_store_dwordx4 %s, v%d, %s, s%d offen sc1" % (vr(SG, 4), go, srd(S_WS), sb + 3))
        a.i("s_mov_b64 exec, -1")
        if gated:
            a.i("v_mov_b32 v%d, 0" % (T + 2))
            a.i("v_mov_b32 v%d, 1" % (T + 3))
            a.i("ds_write_b32 v%d, v%d offset:%d" % (T + 2, T + 3, LF_ATTDONE))

    def kernel(self, name, stages, fused):
        a = self.a
        self.kn = name
        a.raw(kernel_header(name))
        a.hist = []
        a.forget_pending()
        self.prologue()
        lt = self.L("twave")
        a.i("s_cmp_ge_u32 s3, 8")
        a.branch("s_cbranch_scc1", lt)
        if "A" in stages:
            self.a_wave(gated=True if ("X" in stages) else False)
        a.branch("s_branch", "L_exit_" + name)
        a.label(lt)
        a.forget_pending()
        sscr = S_SCR
        need_ln = ("Q" in stages) or ("G" in stages)
        gated = fused
        lt1, lt2, lt3 = self.L("t1"), self.L("t2"), self.L("t3")
        a.i("s_cmp_lg_u32 s3, 8")
        a.branch("s_cbranch_scc1", lt1)
        if "Q" in stages:
            self.q_task()
        else:
            ve = self.VP + 60
            self.tag_acquire_issue(ve)
            self.tag_acquire_finish(ve)
            self.scratch_base(sscr)
        if "X" in stages:
            self.x1_control()
        if "E" in stages:
            a.i("s_mov_b32 s%d, s2" % (S_TASK))
            self.e_task(S_TASK, gated)
        a.branch("s_branch", "L_exit_" + name)
        a.label(lt1)
        a.forget_pending()
        self.scratch_base(sscr)
        if "G" in stages:
            vx = self.VP + 40
            self.ln_issue(vx)
            self.ln_compute(vx, self.VP, sscr)
        a.i("s_cmp_lg_u32 s3, 9")
        a.branch("s_cbranch_scc1", lt2)
        if "G" in stages:
            a.i("s_lshl_b32 s%d, s2, 1" % (S_TASK))
            self.g_task(S_TASK, gated)
        if "D" in stages:
            a.i("s_mov_b32 s%d, s2" % (S_TASK))
            self.d_task(S_TASK, gated)
        a.branch("s_branch", "L_exit_" + name)
        a.label(lt2)
        a.forget_pending()
        a.i("s_cmp_lg_u32 s3, 10")
        a.branch("s_cbranch_scc1", lt3)
        if "G" in stages:
            a.i("s_lshl_b32 s%d, s2, 1" % (S_TASK))
            a.i("s_add_u32 s%d, s%d, 1" % (S_TASK, S_TASK))
            self.g_task(S_TASK, gated)
        le2, ld2 = self.L("e2"), self.L("d2")
        if "E" in stages:
            a.i("s_cmp_ge_u32 s2, 32")
            a.branch("s_cbranch_scc1", le2)
            a.i("s_add_u32 s%d, s2, 256" % (S_TASK))
            self.e_task(S_TASK, gated)
            a.branch("s_branch", "L_exit_" + name)
            a.label(le2)
            a.forget_pending()
        if "D" in stages:
            a.i("s_cmp_lt_u32 s2, 32")
            a.branch("s_cbranch_scc1", "L_exit_" + name)
            a.i("s_cmp_ge_u32 s2, 100")
            a.branch("s_cbranch_scc1", "L_exit_" + name)
            a.i("s_add_u32 s%d, s2, %d" % (S_TASK, 256 - 32))
            self.d_task(S_TASK, gated)
        a.branch("s_branch", "L_exit_" + name)
        a.label(lt3)
        a.forget_pending()
        lg3 = self.L("g3")
        if "G" in stages:
            a.i("s_cmp_lt_u32 s2, 100")
            a.branch("s_cbranch_scc1", lg3)
            a.i("s_cmp_ge_u32 s2, 164")
            a.branch("s_cbranch_scc1", lg3)
            a.i("s_add_u32 s%d, s2, %d" % (S_TASK, 512 - 100))
            self.g_task(S_TASK, gated)
            a.branch("s_branch", "L_exit_" + name)
            a.label(lg3)
            a.forget_pending()
            if gated:
                self.lds_inc(LF_GISSUED, self.VP + 52)
        if "R" in stages:
            a.i("s_cmp_lt_u32 s2, 164")
            a.branch("s_cbranch_scc1", "L_exit_" + name)
            a.i("s_cmp_ge_u32 s2, 200")
            a.branch("s_cbranch_scc1", "L_exit_" + name)
            a.i("s_sub_u32 s%d, s2, 164" % (S_TASK))
            self.r_task(S_TASK, gated)
        a.label("L_exit_" + name)
        a.endpgm()


DEFAULT_PARAMS = dict(win_a=2, win_g=None, spin_lds=0x100000, spin_glb=0x8000)


def build(mode, params=None, out=None):
    p = dict(DEFAULT_PARAMS)
    if params:
        p.update(params)
    g = Gen(p)
    a = g.a
    if mode == "fused":
        kernels = [(KNAME + "_kernel", set("QGXADER"), True)]
    else:
        kernels = [("k1_kernel", set("QG"), False), ("k2_kernel", set("XAD"), False),
                   ("k3_kernel", set("E"), False), ("k4_kernel", set("R"), False)]
    a.raw("; fused decode layer: attention (sliding window 4096) + SwiGLU FFN.  generated by gen/gen_fused.py")
    if mode == "fused":
        a.raw("; @launch grid=(256,1,1) block=(%d,1,1) lds=%d" % (NWAVES * 64, LDS_BYTES))
    else:
        for (n, _, _) in kernels:
            a.raw("; @launch kernel=%s grid=(256,1,1) block=(%d,1,1) lds=%d" % (n, NWAVES * 64, LDS_BYTES))
    a.raw('.amdgcn_target "amdgcn-amd-amdhsa--gfx950"')
    a.raw(".text")
    for (n, st, fz) in kernels:
        g.kernel(n, st, fz)
    a.raw('.section .rodata,"a"')
    for (n, _, _) in kernels:
        a.raw(".p2align 6")
        a.raw(kernel_descriptor(n, 168, 102))
    txt = a.text()
    if out:
        open(out, "w").write(txt)
    return txt, a


if __name__ == "__main__":
    mode = sys.argv[1]
    out = sys.argv[2]
    params = {}
    for kv in sys.argv[3:]:
        k, v = kv.split("=")
        params[k] = None if v == "None" else int(v, 0)
    txt, a = build(mode, params, out)
    print("instructions:", a.n_ins, "stats:", a.stats)
```

```python
import struct
import sys

sys.path.insert(0, "gen")
from asmgen import Asm, kernel_header, kernel_descriptor
from layout import *

KNAME = "recurrent_scan__sliding_block_cached__swiglu_ffn__decode"


def f32(x):
    return "0x%08x" % struct.unpack("<I", struct.pack("<f", x))[0]


S_X, S_K, S_V, S_WQ, S_WO, S_WG, S_WU, S_WD, S_OUT, S_WS = 8, 12, 16, 20, 24, 28, 32, 36, 40, 44
S_T = 48
S_SELLO, S_SELHI = 50, 51
S_M1, S_M0 = 52, 54
S_LO32 = 56
S_SPIN = 58
S_SCR = 60
S_TASK = 61
S_LWT = 62
S_MUL = 63
S_MASK = 64
S_TMP = 66


def srd(b):
    return "s[%d:%d]" % (b, b + 3)


def vr(b, n=1):
    return "v%d" % b if n == 1 else "v[%d:%d]" % (b, b + n - 1)


class Gen:
    def __init__(self, params):
        self.p = params
        self.a = Asm()
        self.lbl = 0

    def L(self, base):
        self.lbl += 1
        return "L_%s_%d" % (base, self.lbl)

    def bf16r(self, dst, src):
        a = self.a
        a.i("v_cvt_pk_bf16_f32 v%d, v%d, v%d" % (dst, src, src))
        a.i("v_lshlrev_b32 v%d, 16, v%d" % (dst, dst))

    def stamp(self, k):
        if not self.p.get("instr"):
            return
        a = self.a
        a.i("s_memrealtime s[96:97]")
        a.waitcnt(lgkm=0)
        a.i("v_writelane_b32 v167, s96, %d" % k)

    def lds_wait_ge(self, off, val, vtmp, stmp):
        a = self.a
        lw, ld = self.L("lw"), self.L("lwd")
        a.i("v_mov_b32 v%d, 0" % (vtmp + 1))
        a.i("s_mov_b32 s%d, 0" % S_SPIN)
        a.label(lw)
        a.i("ds_read_b32 v%d, v%d offset:%d" % (vtmp, vtmp + 1, off))
        a.i("s_add_u32 s%d, s%d, 1" % (S_SPIN, S_SPIN))
        a.i("v_readfirstlane_b32 s%d, v%d" % (stmp, vtmp))
        a.i("s_cmp_ge_u32 s%d, %d" % (stmp, val))
        a.branch("s_cbranch_scc1", ld)
        a.i("s_sleep 1")
        a.i("s_cmp_lt_u32 s%d, 0x%x" % (S_SPIN, self.p["spin_lds"]))
        a.branch("s_cbranch_scc1", lw)
        a.label(ld)

    def lds_inc(self, off, vtmp):
        a = self.a
        a.i("v_mov_b32 v%d, 0" % vtmp)
        a.i("v_mov_b32 v%d, 1" % (vtmp + 1))
        a.i("s_mov_b64 exec, 1")
        a.i("ds_add_u32 v%d, v%d offset:%d" % (vtmp, vtmp + 1, off))
        a.i("s_mov_b64 exec, -1")

    def get_tag_from_lds(self, vtmp):
        a = self.a
        self.lds_wait_ge(LF_TVALID, 1, vtmp, S_LWT)
        a.i("v_mov_b32 v%d, 0" % (vtmp + 2))
        a.i("ds_read_b64 v[%d:%d], v%d offset:%d" % (vtmp, vtmp + 1, vtmp + 2, LF_TLO))
        a.i("v_readfirstlane_b32 s%d, v%d" % (S_T, vtmp))
        a.i("v_readfirstlane_b32 s%d, v%d" % (S_T + 1, vtmp + 1))

    def allreduce16_32(self, x, t, op):
        a = self.a
        a.i("v_mov_b32 v%d, v%d" % (t, x))
        a.i("v_permlane16_swap_b32 v%d, v%d" % (x, t))
        a.i("%s v%d, v%d, v%d" % (op, x, x, t))
        a.i("v_mov_b32 v%d, v%d" % (t, x))
        a.i("v_permlane32_swap_b32 v%d, v%d" % (x, t))
        a.i("%s v%d, v%d, v%d" % (op, x, x, t))

    def wave_allreduce_add(self, x, t):
        a = self.a
        a.i("v_add_f32_dpp v%d, v%d, v%d quad_perm:[1,0,3,2] row_mask:0xf bank_mask:0xf" % (x, x, x))
        a.i("v_add_f32_dpp v%d, v%d, v%d quad_perm:[2,3,0,1] row_mask:0xf bank_mask:0xf" % (x, x, x))
        a.i("v_add_f32_dpp v%d, v%d, v%d row_half_mirror row_mask:0xf bank_mask:0xf" % (x, x, x))
        a.i("v_add_f32_dpp v%d, v%d, v%d row_mirror row_mask:0xf bank_mask:0xf" % (x, x, x))
        self.allreduce16_32(x, t, "v_add_f32")

    def validate(self, regs, smask):
        a = self.a
        first = True
        for r in regs:
            if first:
                a.i("v_cmp_ne_u64 s[%d:%d], s[%d:%d], v[%d:%d]" % (smask, smask + 1, S_T, S_T + 1, r + 2, r + 3))
                first = False
            else:
                a.i("v_cmp_ne_u64 vcc, s[%d:%d], v[%d:%d]" % (S_T, S_T + 1, r + 2, r + 3))
                a.i("s_or_b64 s[%d:%d], s[%d:%d], vcc" % (smask, smask + 1, smask, smask + 1))

    def poll(self, issue_fn, regs, name):
        a = self.a
        lr, lo = self.L(name + "_r"), self.L(name + "_ok")
        smask = S_MASK
        a.i("s_mov_b32 s%d, 0" % S_SPIN)
        a.label(lr)
        issue_fn()
        a.i("s_add_u32 s%d, s%d, 1" % (S_SPIN, S_SPIN))
        a.waitcnt(vm=0)
        self.validate(regs, smask)
        a.i("s_cmp_eq_u64 s[%d:%d], 0" % (smask, smask + 1))
        a.branch("s_cbranch_scc1", lo)
        a.i("s_cmp_lt_u32 s%d, 0x%x" % (S_SPIN, self.p["spin_glb"]))
        a.branch("s_cbranch_scc1", lr)
        a.label(lo)

    def prologue(self):
        a = self.a
        for (s, off) in ((S_X, 0), (S_K, 8), (S_V, 16), (S_WQ, 24), (S_WO, 32), (S_WG, 48), (S_WU, 56), (S_WD, 64),
                         (S_OUT, 72), (S_WS, 88)):
            a.i("s_load_dwordx2 s[%d:%d], s[0:1], %d" % (s, s + 1, off))
        a.i("v_lshrrev_b32 v2, 6, v0")
        a.i("v_and_b32 v1, 63, v0")
        a.i("v_readfirstlane_b32 s3, v2")
        a.i("s_cmp_ge_u32 s2, 256")
        a.branch("s_cbranch_scc1", "L_end_" + self.kn)
        for (s, n) in ((S_X, 1152), (S_K, 67108864), (S_V, 67108864), (S_WQ, 4718592), (S_WO, 4718592),
                       (S_WG, 5308416), (S_WU, 5308416), (S_WD, 5308416), (S_OUT, 1152), (S_WS, WS_BYTES)):
            a.i("s_mov_b32 s%d, 0x%x" % (s + 2, n))
            a.i("s_mov_b32 s%d, 0x20000" % (s + 3))
        a.i("s_mov_b32 s%d, 0x05040100" % S_SELLO)
        a.i("s_mov_b32 s%d, 0x07060302" % S_SELHI)
        a.i("s_mov_b32 s%d, 0xcccccccc" % S_M1)
        a.i("s_mov_b32 s%d, 0xcccccccc" % (S_M1 + 1))
        a.i("s_mov_b32 s%d, 0xaaaaaaaa" % S_M0)
        a.i("s_mov_b32 s%d, 0xaaaaaaaa" % (S_M0 + 1))
        a.i("s_mov_b32 s%d, -1" % S_LO32)
        a.i("s_mov_b32 s%d, 0" % (S_LO32 + 1))
        l0 = self.L("nz")
        a.i("s_cmp_lg_u32 s3, 0")
        a.branch("s_cbranch_scc1", l0)
        a.i("v_mov_b32 v3, 0")
        a.i("v_lshlrev_b32 v4, 2, v1")
        a.i("ds_write_b32 v4, v3")
        a.label(l0)
        a.waitcnt(lgkm=0)
        a.i("s_barrier")
        if self.p.get("instr"):
            a.i("v_mov_b32 v167, 0")

    def ln_issue(self, vx):
        a = self.a
        a.i("v_lshlrev_b32 v%d, 2, v1" % (vx + 5))
        for j in range(5):
            a.i("buffer_load_dword v%d, v%d, %s, 0 offen offset:%d" % (vx + j, vx + 5, srd(S_X), j * 256))

    def ln_compute(self, vx, vt, s_scr):
        a = self.a
        lo = [vt + 2 * j for j in range(5)]
        hi = [vt + 2 * j + 1 for j in range(5)]
        for j in range(5):
            a.i("v_lshlrev_b32 v%d, 16, v%d" % (lo[j], vx + j))
            a.i("v_and_b32 v%d, 0xffff0000, v%d" % (hi[j], vx + j))
        sm, t, mean = vt + 10, vt + 11, vt + 12
        a.i("v_add_f32 v%d, v%d, v%d" % (sm, lo[0], hi[0]))
        for j in range(1, 5):
            a.i("v_add_f32 v%d, v%d, v%d" % (sm, sm, lo[j]))
            a.i("v_add_f32 v%d, v%d, v%d" % (sm, sm, hi[j]))
        self.wave_allreduce_add(sm, t)
        a.i("v_mul_f32 v%d, %s, v%d" % (mean, f32(1.0 / 576.0), sm))
        sq, d = vt + 13, vt + 14
        a.i("v_mov_b32 v%d, 0" % sq)
        for j in range(5):
            for r in (lo[j], hi[j]):
                a.i("v_sub_f32 v%d, v%d, v%d" % (d, r, mean))
                if j == 4:
                    a.i("v_cndmask_b32 v%d, 0, v%d, s[%d:%d]" % (d, d, S_LO32, S_LO32 + 1))
                a.i("v_fmac_f32 v%d, v%d, v%d" % (sq, d, d))
        self.wave_allreduce_add(sq, t)
        a.i("v_mul_f32 v%d, %s, v%d" % (sq, f32(1.0 / 576.0), sq))
        mb, vb = vt + 15, vt + 16
        self.bf16r(mb, mean)
        self.bf16r(vb, sq)
        a.i("v_add_f32 v%d, %s, v%d" % (vb, f32(1e-5), vb))
        self.bf16r(vb, vb)
        a.i("v_sqrt_f32 v%d, v%d" % (vb, vb))
        self.bf16r(vb, vb)
        inv = vt + 17
        a.i("v_rcp_f32 v%d, v%d" % (inv, vb))
        ad, t2 = vt + 18, vt + 19
        a.i("v_lshrrev_b32 v%d, 3, v1" % ad)
        a.i("v_lshlrev_b32 v%d, 5, v%d" % (ad, ad))
        a.i("v_and_b32 v%d, 3, v1" % t2)
        a.i("v_lshl_add_u32 v%d, v%d, 3, v%d" % (ad, t2, ad))
        a.i("v_bfe_u32 v%d, v1, 2, 1" % t2)
        a.i("v_lshl_add_u32 v%d, v%d, 1, v%d" % (ad, t2, ad))
        a.i("v_add_u32 v%d, s%d, v%d" % (ad, s_scr, ad))
        q0, e = vt + 20, vt + 21
        for j in range(5):
            for r in (lo[j], hi[j]):
                a.i("v_sub_f32 v%d, v%d, v%d" % (r, r, mb))
            a.i("v_cvt_pk_bf16_f32 v%d, v%d, v%d" % (t, lo[j], hi[j]))
            a.i("v_lshlrev_b32 v%d, 16, v%d" % (lo[j], t))
            a.i("v_and_b32 v%d, 0xffff0000, v%d" % (hi[j], t))
            for r in (lo[j], hi[j]):
                a.i("v_mul_f32 v%d, v%d, v%d" % (q0, r, inv))
                a.i("v_fma_f32 v%d, -v%d, v%d, v%d" % (e, q0, vb, r))
                a.i("v_fma_f32 v%d, v%d, v%d, v%d" % (r, e, inv, q0))
            a.i("v_cvt_pk_bf16_f32 v%d, v%d, v%d" % (t, lo[j], hi[j]))
            a.i("ds_write_b16 v%d, v%d offset:%d" % (ad, t, j * 256))
            a.i("ds_write_b16_d16_hi v%d, v%d offset:%d" % (ad, t, j * 256 + 4))

    def mv_voff(self, dst, pitch):
        a = self.a
        a.i("v_lshrrev_b32 v%d, 3, v1" % dst)
        a.i("s_mov_b32 s%d, %d" % (S_MUL, pitch))
        a.i("v_mul_lo_u32 v%d, v%d, s%d" % (dst, dst, S_MUL))
        a.i("v_and_b32 v%d, 7, v1" % (dst + 1))
        a.i("v_lshl_add_u32 v%d, v%d, 4, v%d" % (dst, dst + 1, dst))

    def mv_issue(self, s_srd, s_base, pitch, nload, W, voff, window=None):
        a = self.a
        for i in range(nload):
            if window is not None and i >= window:
                a.waitcnt(vm=window - 1)
            a.i("buffer_load_dwordx4 %s, v%d, %s, s%d offen nt" % (vr(W + 4 * i, 4), voff, srd(s_srd), s_base))
            if i + 1 < nload:
                a.i("s_add_u32 s%d, s%d, %d" % (s_base, s_base, 8 * pitch))

    def mv_perm(self, nload, W, tmp):
        a = self.a
        for p in range(nload // 2):
            for t in range(4):
                A = W + 8 * p + t
                B = W + 8 * p + 4 + t
                a.i("v_perm_b32 v%d, v%d, v%d, s%d" % (tmp, B, A, S_SELLO))
                a.i("v_perm_b32 v%d, v%d, v%d, s%d" % (B, B, A, S_SELHI))
                a.i("v_mov_b32 v%d, v%d" % (A, tmp))

    def mv_read_apairs(self, npair, ap, s_addr_base, vtmp):
        a = self.a
        a.i("v_lshrrev_b32 v%d, 3, v1" % vtmp)
        a.i("v_lshlrev_b32 v%d, 2, v%d" % (vtmp, vtmp))
        a.i("v_add_u32 v%d, s%d, v%d" % (vtmp, s_addr_base, vtmp))
        for p in range(npair):
            a.i("ds_read_b32 v%d, v%d offset:%d" % (ap + p, vtmp, p * 32))

    def mv_dot(self, nload, W, ap, acc):
        a = self.a
        for p in range(nload // 2):
            for t in range(4):
                A = W + 8 * p + t
                B = W + 8 * p + 4 + t
                if p == 0:
                    a.i("v_dot2_f32_bf16 v%d, v%d, v%d, 0" % (acc + 2 * t, A, ap))
                    a.i("v_dot2_f32_bf16 v%d, v%d, v%d, 0" % (acc + 2 * t + 1, B, ap))
                else:
                    a.i("v_dot2c_f32_bf16 v%d, v%d, v%d" % (acc + 2 * t, A, ap + p))
                    a.i("v_dot2c_f32_bf16 v%d, v%d, v%d" % (acc + 2 * t + 1, B, ap + p))

    def mv_perm_dot(self, nload, W, ap, acc, tmp):
        a = self.a
        for p in range(nload // 2):
            for t in range(4):
                A = W + 8 * p + t
                B = W + 8 * p + 4 + t
                a.i("v_perm_b32 v%d, v%d, v%d, s%d" % (tmp, B, A, S_SELLO))
                a.i("v_perm_b32 v%d, v%d, v%d, s%d" % (tmp + 1, B, A, S_SELHI))
                if p == 0:
                    a.i("v_dot2_f32_bf16 v%d, v%d, v%d, 0" % (acc + 2 * t, tmp, ap))
                    a.i("v_dot2_f32_bf16 v%d, v%d, v%d, 0" % (acc + 2 * t + 1, tmp + 1, ap))
                else:
                    a.i("v_dot2c_f32_bf16 v%d, v%d, v%d" % (acc + 2 * t, tmp, ap + p))
                    a.i("v_dot2c_f32_bf16 v%d, v%d, v%d" % (acc + 2 * t + 1, tmp + 1, ap + p))

    def mv_reduce_publish(self, acc, s_off, vtmp):
        a = self.a
        for k in range(4):
            a.i("v_permlane32_swap_b32 v%d, v%d" % (acc + k, acc + k + 4))
        for k in range(4):
            a.i("v_add_f32 v%d, v%d, v%d" % (acc + k, acc + k, acc + k + 4))
        for k in range(2):
            a.i("v_permlane16_swap_b32 v%d, v%d" % (acc + k, acc + k + 2))
        for k in range(2):
            a.i("v_add_f32 v%d, v%d, v%d" % (acc + k, acc + k, acc + k + 2))
        a.i("v_add_f32_dpp v%d, v%d, v%d row_ror:8 row_mask:0xf bank_mask:0x3" % (acc, acc, acc))
        a.i("v_add_f32_dpp v%d, v%d, v%d row_ror:8 row_mask:0xf bank_mask:0xc" % (acc, acc + 1, acc + 1))
        g = vtmp
        a.i("v_mov_b32 v%d, v%d" % (g, acc))
        a.i("v_mov_b32_dpp v%d, v%d row_ror:8 row_mask:0xf bank_mask:0xf" % (g + 1, acc))
        a.i("v_mov_b32 v%d, s%d" % (g + 2, S_T))
        a.i("v_mov_b32 v%d, s%d" % (g + 3, S_T + 1))
        ad, t = g + 4, g + 5
        a.i("v_and_b32 v%d, 7, v1" % ad)
        a.i("v_lshlrev_b32 v%d, 6, v%d" % (ad, ad))
        a.i("v_lshrrev_b32 v%d, 5, v1" % t)
        a.i("v_lshl_add_u32 v%d, v%d, 5, v%d" % (ad, t, ad))
        a.i("v_bfe_u32 v%d, v1, 4, 1" % t)
        a.i("v_lshl_add_u32 v%d, v%d, 4, v%d" % (ad, t, ad))
        a.i("s_mov_b32 exec_lo, 0x00ff00ff")
        a.i("s_mov_b32 exec_hi, 0x00ff00ff")
        a.i("buffer_store_dwordx4 %s, v%d, %s, s%d offen sc1" % (vr(g, 4), ad, srd(S_WS), s_off))
        a.i("s_mov_b64 exec, -1")

    def scratch_base(self, sdst):
        a = self.a
        a.i("s_mul_i32 s%d, s3, %d" % (sdst, L_SCR_STRIDE))
        a.i("s_add_u32 s%d, s%d, %d" % (sdst, sdst, L_SCR))

    def div9(self, q, r, x):
        a = self.a
        a.i("s_mul_i32 s%d, s%d, 7282" % (q, x))
        a.i("s_lshr_b32 s%d, s%d, 16" % (q, q))
        a.i("s_mul_i32 s%d, s%d, 9" % (r, q))
        a.i("s_sub_u32 s%d, s%d, s%d" % (r, x, r))

    VW = 8
    VP = 80
    VACC = 152
    VAP = 160

    def tag_acquire_issue(self, ve):
        a = self.a
        a.i("v_mov_b32 v%d, 0" % (ve + 2))
        a.i("buffer_load_dwordx2 v[%d:%d], v%d, %s, 0 offen offset:%d sc1" % (ve, ve + 1, ve + 2, srd(S_WS), WS_EPOCH))

    def tag_acquire_finish(self, ve):
        a = self.a
        a.i("v_add_co_u32 v%d, vcc, 1, v%d" % (ve, ve))
        a.i("v_addc_co_u32 v%d, vcc, 0, v%d, vcc" % (ve + 1, ve + 1))
        a.i("v_readfirstlane_b32 s%d, v%d" % (S_T, ve))
        a.i("v_readfirstlane_b32 s%d, v%d" % (S_T + 1, ve + 1))
        a.i("v_mov_b32 v%d, 0" % (ve + 2))
        a.i("ds_write_b64 v%d, v[%d:%d] offset:%d" % (ve + 2, ve, ve + 1, LF_TLO))
        a.waitcnt(lgkm=0)
        a.i("v_mov_b32 v%d, 1" % (ve + 3))
        a.i("ds_write_b32 v%d, v%d offset:%d" % (ve + 2, ve + 3, LF_TVALID))

    def q_task(self):
        a = self.a
        W, VP, ACC = self.VW, self.VP, self.VACC
        sb, sscr, so = S_TMP, S_SCR, S_TMP + 2
        ve = VP + 60
        self.stamp(0)
        self.tag_acquire_issue(ve)
        vx = VP + 40
        self.ln_issue(vx)
        a.i("s_and_b32 s%d, s2, 3" % sb)
        a.i("s_lshr_b32 s%d, s2, 4" % so)
        a.i("s_lshl_b32 s%d, s%d, 2" % (so, so))
        a.i("s_add_u32 s%d, s%d, s%d" % (so, so, sb))
        a.i("s_lshl_b32 s%d, s%d, 7" % (sb, so))
        a.i("s_bfe_u32 s%d, s2, 0x20002" % (so + 1))
        a.i("s_mul_i32 s%d, s%d, %d" % (so + 2, so + 1, 144 * 8192))
        a.i("s_add_u32 s%d, s%d, s%d" % (sb, sb, so + 2))
        voff = VP + 50
        self.mv_voff(voff, 8192)
        self.mv_issue(S_WQ, sb, 8192, 18, W, voff)
        if self.fused:
            a.i("s_barrier")
        self.stamp(1)
        self.tag_acquire_finish(ve)
        self.scratch_base(sscr)
        self.ln_compute(vx, VP, sscr)
        self.stamp(2)
        a.i("s_mul_i32 s%d, s%d, %d" % (so + 2, so + 1, 9 * 32))
        a.i("s_add_u32 s%d, s%d, s%d" % (so + 2, so + 2, sscr))
        ap = VP + 24
        self.mv_read_apairs(9, ap, so + 2, VP + 34)
        self.mv_perm_dot(18, W, ap, ACC, VP + 34)
        self.stamp(3)
        a.i("s_lshl_b32 s%d, s%d, 2" % (so, so))
        a.i("s_add_u32 s%d, s%d, s%d" % (so, so, so + 1))
        a.i("s_lshl_b32 s%d, s%d, 9" % (so, so))
        a.i("s_add_u32 s%d, s%d, 0x%x" % (so, so, WS_XQ))
        self.mv_reduce_publish(ACC, so, VP + 36)
        self.stamp(4)

    def x1_control(self):
        a = self.a
        VP = self.VP
        sb = S_TMP
        a.i("s_lshr_b32 s%d, s2, 4" % sb)
        a.i("s_lshl_b32 s%d, s%d, 13" % (sb, sb))
        a.i("s_add_u32 s%d, s%d, 0x%x" % (sb, sb, WS_XQ))
        a.i("s_add_u32 s%d, s%d, 4096" % (sb + 1, sb))
        vo = VP + 40
        a.i("v_lshlrev_b32 v%d, 4, v1" % vo)
        regs = [VP + 4 * j for j in range(8)]

        def issue():
            for j in range(8):
                a.i("buffer_load_dwordx4 %s, v%d, %s, s%d offen offset:%d sc1" % (
                    vr(regs[j], 4), vo, srd(S_WS), sb + (j >> 2), (j & 3) * 1024))
        self.poll(issue, regs, "x1")
        self.stamp(5)
        t = VP + 41
        for c in range(4):
            A, B = regs[2 * c], regs[2 * c + 1]
            for e in range(2):
                a.i("v_add_f32 v%d, v%d, v%d" % (A + e, A + e, B + e))
            for e in range(2):
                a.i("v_mov_b32 v%d, v%d" % (t + e, A + e))
                a.i("v_permlane32_swap_b32 v%d, v%d" % (A + e, t + e))
                a.i("v_add_f32 v%d, v%d, v%d" % (A + e, A + e, t + e))
            a.i("v_cvt_pk_bf16_f32 v%d, v%d, v%d" % (A, A, A + 1))
        ad = VP + 44
        a.i("v_and_b32 v%d, 31, v1" % ad)
        a.i("v_lshlrev_b32 v%d, 2, v%d" % (ad, ad))
        for c in range(4):
            a.i("ds_write_b32 v%d, v%d offset:%d" % (ad, regs[2 * c], L_Q + c * 128))
        a.waitcnt(lgkm=0)
        a.i("v_mov_b32 v%d, 0" % ad)
        a.i("v_mov_b32 v%d, 1" % (ad + 1))
        a.i("ds_write_b32 v%d, v%d offset:%d" % (ad, ad + 1, LF_QREADY))
        self.stamp(6)

    def g_task(self, s_g, gated):
        a = self.a
        W, VP, ACC = self.VW, self.VP, self.VACC
        sb, so, sscr = S_TMP + 4, S_TMP + 5, S_SCR
        a.i("s_and_b32 s%d, s%d, 3" % (so + 1, s_g))
        a.i("s_lshr_b32 s%d, s%d, 4" % (so + 2, s_g))
        a.i("s_bfe_u32 s%d, s%d, 0x10002" % (so + 3, s_g))
        a.i("s_lshl_b32 s%d, s%d, 1" % (sb, so + 2))
        a.i("s_add_u32 s%d, s%d, s%d" % (sb, sb, so + 3))
        a.i("s_lshl_b32 s%d, s%d, 7" % (sb, sb))
        a.i("s_mul_i32 s%d, s%d, %d" % (so + 4, so + 1, 144 * 9216))
        a.i("s_add_u32 s%d, s%d, s%d" % (sb, sb, so + 4))
        voff = VP + 50
        self.mv_voff(voff, 9216)
        a.i("s_mul_i32 s%d, s%d, %d" % (so + 4, so + 1, 9 * 32))
        a.i("s_add_u32 s%d, s%d, s%d" % (so + 4, so + 4, sscr))
        ap = VP + 24
        self.mv_read_apairs(9, ap, so + 4, VP + 34)
        if gated:
            self.lds_wait_ge(LF_ISSUE, 8, VP + 52, S_LWT)
        self.stamp(2)
        lu, ld = self.L("gup"), self.L("gdn")
        a.i("s_bitcmp1_b32 s%d, 3" % s_g)
        a.branch("s_cbranch_scc1", lu)
        pre = list(a.vm)
        self.mv_issue(S_WG, sb, 9216, 18, W, voff, self.p["win_g"])
        a.branch("s_branch", ld)
        a.label(lu)
        a.vm = pre
        self.mv_issue(S_WU, sb, 9216, 18, W, voff, self.p["win_g"])
        a.label(ld)
        self.stamp(3)
        if gated:
            self.lds_inc(LF_GISSUED, VP + 52)
        self.mv_perm_dot(18, W, ap, ACC, VP + 34)
        self.stamp(4)
        a.i("s_lshl_b32 s%d, s%d, 9" % (so, s_g))
        a.i("s_add_u32 s%d, s%d, 0x%x" % (so, so, WS_XF))
        self.get_tag_from_lds(VP + 52)
        self.mv_reduce_publish(ACC, so, VP + 36)
        self.stamp(5)

    def act_pairs_to_scratch(self, vpk, s_scr, kreg, vtmp):
        a = self.a
        ad, t = vtmp, vtmp + 1
        a.i("v_lshrrev_b32 v%d, 3, v%d" % (ad, kreg))
        a.i("v_lshlrev_b32 v%d, 5, v%d" % (ad, ad))
        a.i("v_and_b32 v%d, 3, v%d" % (t, kreg))
        a.i("v_lshl_add_u32 v%d, v%d, 3, v%d" % (ad, t, ad))
        a.i("v_bfe_u32 v%d, v%d, 2, 1" % (t, kreg))
        a.i("v_lshl_add_u32 v%d, v%d, 1, v%d" % (ad, t, ad))
        a.i("v_add_u32 v%d, s%d, v%d" % (ad, s_scr, ad))
        a.i("ds_write_b16 v%d, v%d" % (ad, vpk))
        a.i("ds_write_b16_d16_hi v%d, v%d offset:4" % (ad, vpk))

    def silu(self, dst, x, t):
        a = self.a
        a.i("v_mul_f32 v%d, %s, v%d" % (t, f32(-LOG2E), x))
        a.i("v_exp_f32 v%d, v%d" % (t, t))
        a.i("v_add_f32 v%d, 1.0, v%d" % (t, t))
        a.i("v_rcp_f32 v%d, v%d" % (t, t))
        a.i("v_mul_f32 v%d, v%d, v%d" % (dst, x, t))

    def d_task(self, s_d, gated):
        a = self.a
        W, VP, ACC = self.VW, self.VP, self.VACC
        sq, sr, sb, so, sscr = S_TMP + 4, S_TMP + 5, S_TMP + 6, S_TMP + 8, S_SCR
        self.div9(sq, sr, s_d)
        a.i("s_mul_i32 s%d, s%d, %d" % (sb, sq, 128 * 1152))
        a.i("s_lshl_b32 s%d, s%d, 7" % (so, sr))
        a.i("s_add_u32 s%d, s%d, s%d" % (sb, sb, so))
        voff = VP + 66
        self.mv_voff(voff, 1152)
        if gated:
            self.lds_wait_ge(LF_GISSUED, 3, VP + 68, S_LWT)
        self.stamp(7)
        self.mv_issue(S_WD, sb, 1152, 16, W, voff)
        self.get_tag_from_lds(VP + 68)
        self.mv_perm(16, W, VP + 64)
        self.stamp(8)
        a.i("s_lshl_b32 s%d, s%d, 13" % (sb, sq))
        a.i("s_add_u32 s%d, s%d, 0x%x" % (sb, sb, WS_XF))
        a.i("s_add_u32 s%d, s%d, 4096" % (sb + 1, sb))
        vo = VP + 65
        a.i("v_lshlrev_b32 v%d, 4, v1" % vo)
        regs = [VP + 4 * j for j in range(8)]

        def issue():
            for j in range(8):
                a.i("buffer_load_dwordx4 %s, v%d, %s, s%d offen offset:%d sc1" % (
                    vr(regs[j], 4), vo, srd(S_WS), sb + (j >> 2), (j & 3) * 1024))
        self.poll(issue, regs, "x1f")
        self.stamp(10)
        t = VP + 40
        for mc in range(4):
            A, B = regs[2 * mc], regs[2 * mc + 1]
            for e in range(2):
                a.i("v_add_f32 v%d, v%d, v%d" % (A + e, A + e, B + e))
            for e in range(2):
                a.i("v_mov_b32 v%d, v%d" % (t + e, A + e))
                a.i("v_permlane32_swap_b32 v%d, v%d" % (A + e, t + e))
                a.i("v_add_f32 v%d, v%d, v%d" % (A + e, A + e, t + e))
        kreg = VP + 44
        for cgl in range(2):
            Gt, Ut = regs[2 * cgl], regs[4 + 2 * cgl]
            for e in range(2):
                self.bf16r(Gt + e, Gt + e)
                self.bf16r(Ut + e, Ut + e)
                self.silu(Gt + e, Gt + e, t)
                self.bf16r(Gt + e, Gt + e)
                a.i("v_mul_f32 v%d, v%d, v%d" % (Gt + e, Gt + e, Ut + e))
            a.i("v_cvt_pk_bf16_f32 v%d, v%d, v%d" % (Gt, Gt, Gt + 1))
            a.i("v_and_b32 v%d, 31, v1" % kreg)
            if cgl:
                a.i("v_add_u32 v%d, 32, v%d" % (kreg, kreg))
            self.act_pairs_to_scratch(Gt, sscr, kreg, VP + 46)
        ap = VP + 48
        self.mv_read_apairs(8, ap, sscr, VP + 46)
        self.mv_dot(16, W, ap, ACC)
        a.i("s_mul_i32 s%d, s%d, 36" % (so, sr))
        a.i("s_add_u32 s%d, s%d, s%d" % (so, so, sq))
        a.i("s_lshl_b32 s%d, s%d, 9" % (so, so))
        a.i("s_add_u32 s%d, s%d, 0x%x" % (so, so, WS_XD))
        self.mv_reduce_publish(ACC, so, VP + 56)
        self.stamp(11)

    def e_task(self, s_e, gated):
        a = self.a
        W, VP, ACC = self.VW, self.VP, self.VACC
        sq, sr, sb, so, sscr = S_TMP + 4, S_TMP + 5, S_TMP + 6, S_TMP + 8, S_SCR
        self.div9(sq, sr, s_e)
        a.i("s_mul_i32 s%d, s%d, %d" % (sb, sq, 128 * 1152))
        a.i("s_lshl_b32 s%d, s%d, 7" % (so, sr))
        a.i("s_add_u32 s%d, s%d, s%d" % (sb, sb, so))
        voff = VP + 60
        self.mv_voff(voff, 1152)
        if gated:
            self.lds_wait_ge(LF_GISSUED, 3, VP + 68, S_LWT)
        self.stamp(7)
        self.mv_issue(S_WO, sb, 1152, 16, W, voff)
        self.get_tag_from_lds(VP + 68)
        self.mv_perm(16, W, VP + 68)
        self.stamp(8)
        if gated:
            self.lds_wait_ge(LF_ATTDONE, 1, VP + 68, S_LWT)
        self.stamp(9)
        a.i("s_lshl_b32 s%d, s%d, 14" % (sb, sq))
        a.i("s_add_u32 s%d, s%d, 0x%x" % (sb, sb, WS_XO))
        for k in range(1, 4):
            a.i("s_add_u32 s%d, s%d, %d" % (sb + 10 + k, sb, 4096 * k))
        a.i("s_lshl_b32 s%d, s%d, 8" % (so, sq))
        a.i("s_add_u32 s%d, s%d, 0x%x" % (so, so, WS_XOS))
        vo, vs = VP + 68, VP + 69
        a.i("v_lshlrev_b32 v%d, 4, v1" % vo)
        a.i("v_and_b32 v%d, 15, v1" % vs)
        a.i("v_lshlrev_b32 v%d, 4, v%d" % (vs, vs))
        regs = [VP + 4 * j for j in range(16)]
        rst = VP + 64

        def issue():
            a.i("buffer_load_dwordx4 %s, v%d, %s, s%d offen sc1" % (vr(rst, 4), vs, srd(S_WS), so))
            for j in range(16):
                sreg = sb if j < 4 else sb + 10 + (j >> 2)
                a.i("buffer_load_dwordx4 %s, v%d, %s, s%d offen offset:%d sc1" % (
                    vr(regs[j], 4), vo, srd(S_WS), sreg, (j & 3) * 1024))
        self.poll(issue, [rst] + regs, "x2")
        self.stamp(10)
        M, w, t = VP + 70, VP + 71, rst + 2
        a.i("v_max_f32_dpp v%d, v%d, v%d row_ror:1 row_mask:0xf bank_mask:0xf" % (M, rst, rst))
        for k in (2, 4, 8):
            a.i("v_max_f32_dpp v%d, v%d, v%d row_ror:%d row_mask:0xf bank_mask:0xf" % (M, M, M, k))
        a.i("v_sub_f32 v%d, v%d, v%d" % (w, rst, M))
        a.i("v_mul_f32 v%d, %s, v%d" % (w, f32(LOG2E), w))
        a.i("v_exp_f32 v%d, v%d" % (w, w))
        a.i("v_mul_f32 v%d, v%d, v%d" % (t, w, rst + 1))
        for k in (1, 2, 4, 8):
            a.i("v_add_f32_dpp v%d, v%d, v%d row_ror:%d row_mask:0xf bank_mask:0xf" % (t, t, t, k))
        a.i("v_rcp_f32 v%d, v%d" % (t, t))
        a.i("v_mul_f32 v%d, v%d, v%d" % (w, w, t))
        o0, o1 = rst, rst + 1
        for j in range(16):
            if j == 0:
                a.i("v_mul_f32_dpp v%d, v%d, v%d row_newbcast:0 row_mask:0xf bank_mask:0xf" % (o0, w, regs[0]))
                a.i("v_mul_f32_dpp v%d, v%d, v%d row_newbcast:0 row_mask:0xf bank_mask:0xf" % (o1, w, regs[0] + 1))
            else:
                a.i("v_fmac_f32_dpp v%d, v%d, v%d row_newbcast:%d row_mask:0xf bank_mask:0xf" % (o0, w, regs[j], j))
                a.i("v_fmac_f32_dpp v%d, v%d, v%d row_newbcast:%d row_mask:0xf bank_mask:0xf" % (o1, w, regs[j] + 1, j))
        a.i("v_cvt_pk_bf16_f32 v%d, v%d, v%d" % (o0, o0, o1))
        self.act_pairs_to_scratch(o0, sscr, 1, VP + 70)
        ap = VP
        self.mv_read_apairs(8, ap, sscr, VP + 70)
        self.mv_dot(16, W, ap, ACC)
        a.i("s_lshl_b32 s%d, s%d, 5" % (so, sr))
        a.i("s_add_u32 s%d, s%d, s%d" % (so, so, sq))
        a.i("s_lshl_b32 s%d, s%d, 9" % (so, so))
        a.i("s_add_u32 s%d, s%d, 0x%x" % (so, so, WS_XS))
        self.mv_reduce_publish(ACC, so, VP + 8)
        self.stamp(11)

    def r_task(self, s_r, gated):
        a = self.a
        VP = self.VW
        sc, sd_, sx = S_TMP + 4, S_TMP + 5, S_TMP + 6
        a.i("s_lshr_b32 s%d, s%d, 2" % (sc, s_r))
        a.i("s_and_b32 s%d, s%d, 3" % (sd_, s_r))
        vx, vxo = VP + 60, VP + 61
        a.i("v_and_b32 v%d, 7, v1" % vxo)
        a.i("v_lshlrev_b32 v%d, 2, v%d" % (vxo, vxo))
        a.i("s_lshl_b32 s%d, s%d, 7" % (sx, sc))
        a.i("s_lshl_b32 s%d, s%d, 5" % (sx + 1, sd_))
        a.i("s_add_u32 s%d, s%d, s%d" % (sx, sx, sx + 1))
        a.i("buffer_load_dword v%d, v%d, %s, s%d offen" % (vx, vxo, srd(S_X), sx))
        self.get_tag_from_lds(VP + 64)
        if gated:
            self.lds_wait_ge(LF_ATTDONE, 1, VP + 64, S_LWT)
        ss, sf = S_TMP + 10, S_TMP + 16
        a.i("s_lshl_b32 s%d, s%d, 14" % (ss, sc))
        a.i("s_lshl_b32 s%d, s%d, 7" % (ss + 1, sd_))
        a.i("s_add_u32 s%d, s%d, s%d" % (ss, ss, ss + 1))
        a.i("s_add_u32 s%d, s%d, 0x%x" % (ss, ss, WS_XS))
        for k in range(1, 4):
            a.i("s_add_u32 s%d, s%d, %d" % (ss + k, ss, 4096 * k))
        a.i("s_mul_i32 s%d, s%d, %d" % (sf, sc, 36 * 512))
        a.i("s_lshl_b32 s%d, s%d, 7" % (sf + 1, sd_))
        a.i("s_add_u32 s%d, s%d, s%d" % (sf, sf, sf + 1))
        a.i("s_add_u32 s%d, s%d, 0x%x" % (sf, sf, WS_XD))
        for k in range(1, 5):
            a.i("s_add_u32 s%d, s%d, %d" % (sf + k, sf, 4096 * k))
        vo, vo2, t = VP + 62, VP + 63, VP + 64
        a.i("v_lshrrev_b32 v%d, 3, v1" % vo)
        a.i("v_and_b32 v%d, 3, v%d" % (vo2, vo))
        a.i("v_lshlrev_b32 v%d, 9, v%d" % (vo, vo))
        a.i("v_lshlrev_b32 v%d, 9, v%d" % (vo2, vo2))
        a.i("v_and_b32 v%d, 7, v1" % t)
        a.i("v_lshl_add_u32 v%d, v%d, 4, v%d" % (vo, t, vo))
        a.i("v_lshl_add_u32 v%d, v%d, 4, v%d" % (vo2, t, vo2))
        rs = [VP + 4 * j for j in range(4)]
        rf = [VP + 16 + 4 * j for j in range(5)]

        def issue():
            for j in range(4):
                a.i("buffer_load_dwordx4 %s, v%d, %s, s%d offen sc1" % (vr(rs[j], 4), vo, srd(S_WS), ss + j))
            for j in range(4):
                a.i("buffer_load_dwordx4 %s, v%d, %s, s%d offen sc1" % (vr(rf[j], 4), vo, srd(S_WS), sf + j))
            a.i("buffer_load_dwordx4 %s, v%d, %s, s%d offen sc1" % (vr(rf[4], 4), vo2, srd(S_WS), sf + 4))
        self.stamp(9)
        self.poll(issue, rs + rf, "x3")
        self.stamp(10)
        for e in range(2):
            a.i("v_cndmask_b32 v%d, 0, v%d, s[%d:%d]" % (rf[4] + e, rf[4] + e, S_LO32, S_LO32 + 1))
        for e in range(2):
            for j in range(1, 4):
                a.i("v_add_f32 v%d, v%d, v%d" % (rs[0] + e, rs[0] + e, rs[j] + e))
            for j in range(1, 5):
                a.i("v_add_f32 v%d, v%d, v%d" % (rf[0] + e, rf[0] + e, rf[j] + e))
        for r in (rs[0], rs[0] + 1, rf[0], rf[0] + 1):
            a.i("v_add_f32_dpp v%d, v%d, v%d row_ror:8 row_mask:0xf bank_mask:0xf" % (r, r, r))
            self.allreduce16_32(r, t, "v_add_f32")
        xl, xh = VP + 40, VP + 41
        a.i("v_lshlrev_b32 v%d, 16, v%d" % (xl, vx))
        a.i("v_and_b32 v%d, 0xffff0000, v%d" % (xh, vx))
        for e in range(2):
            s_, f_, x_ = rs[0] + e, rf[0] + e, (xl, xh)[e]
            self.bf16r(s_, s_)
            self.bf16r(f_, f_)
            self.silu(f_, f_, t)
            self.bf16r(f_, f_)
            a.i("v_mul_f32 v%d, v%d, v%d" % (s_, s_, f_))
            self.bf16r(s_, s_)
            a.i("v_add_f32 v%d, v%d, v%d" % (s_, x_, s_))
        a.i("v_cvt_pk_bf16_f32 v%d, v%d, v%d" % (rs[0], rs[0], rs[0] + 1))
        a.i("s_mov_b64 exec, 0xff")
        a.i("buffer_store_dword v%d, v%d, %s, s%d offen" % (rs[0], vxo, srd(S_OUT), sx))
        a.i("s_mov_b64 exec, -1")
        self.stamp(11)
        le = self.L("noep")
        a.i("s_cmp_lg_u32 s%d, 0" % s_r)
        a.branch("s_cbranch_scc1", le)
        a.i("v_mov_b32 v%d, s%d" % (VP + 44, S_T))
        a.i("v_mov_b32 v%d, s%d" % (VP + 45, S_T + 1))
        a.i("v_mov_b32 v%d, 0" % (VP + 46))
        a.i("s_mov_b64 exec, 1")
        a.i("buffer_store_dwordx2 v[%d:%d], v%d, %s, 0 offen offset:%d sc1" % (VP + 44, VP + 45, VP + 46, srd(S_WS), WS_EPOCH))
        a.i("s_mov_b64 exec, -1")
        a.label(le)

    def a_wave(self, gated):
        a = self.a
        WA = self.p["win_a"]
        KV = 8
        VQ = 72
        P = 80
        ACC = 96
        T = 112
        sb = S_TMP
        a.i("s_lshr_b32 s%d, s2, 4" % sb)
        a.i("s_lshl_b32 s%d, s%d, 22" % (sb, sb))
        a.i("s_and_b32 s%d, s2, 15" % (sb + 1))
        a.i("s_lshl_b32 s%d, s%d, 16" % (sb + 1, sb + 1))
        a.i("s_add_u32 s%d, s%d, s%d" % (sb, sb, sb + 1))
        a.i("s_lshl_b32 s%d, s3, 13" % (sb + 1))
        a.i("s_add_u32 s%d, s%d, s%d" % (sb, sb, sb + 1))
        a.i("s_add_u32 s%d, s%d, 0x300000" % (sb, sb))
        a.i("s_add_u32 s%d, s%d, 4096" % (sb + 1, sb))
        vo = T
        a.i("v_lshlrev_b32 v%d, 4, v1" % vo)
        rot = self.p.get("rot", 0)
        if rot:
            a.i("s_mul_i32 s%d, s3, %d" % (sb + 16, rot))
            for n in range(8):
                a.i("s_add_u32 s%d, s%d, %d" % (sb + 8 + n, sb + 16, n))
                a.i("s_and_b32 s%d, s%d, 7" % (sb + 8 + n, sb + 8 + n))
                a.i("s_lshl_b32 s%d, s%d, 10" % (sb + 8 + n, sb + 8 + n))
                a.i("s_add_u32 s%d, s%d, s%d" % (sb + 8 + n, sb + 8 + n, sb))

        def issue(n):
            s_ = S_K if n < 8 else S_V
            j = n & 7
            if rot:
                a.i("buffer_load_dwordx4 %s, v%d, %s, s%d offen nt" % (vr(KV + 4 * n, 4), vo, srd(s_), sb + 8 + j))
            else:
                a.i("buffer_load_dwordx4 %s, v%d, %s, s%d offen offset:%d nt" % (
                    vr(KV + 4 * n, 4), vo, srd(s_), sb + (j >> 2), (j & 3) * 1024))
        nxt = 0
        self.stamp(0)
        for n in range(WA):
            issue(n)
            nxt += 1
        while nxt < 16:
            a.waitcnt(vm=WA - 1)
            issue(nxt)
            nxt += 1
        if gated:
            self.lds_inc(LF_ISSUE, T + 2)
        self.stamp(1)
        if gated:
            self.lds_wait_ge(LF_QREADY, 1, T + 2, S_LWT)
        self.stamp(2)
        a.i("v_and_b32 v%d, 15, v1" % (T + 2))
        a.i("v_lshlrev_b32 v%d, 4, v%d" % (T + 2, T + 2))
        a.i("ds_read_b128 %s, v%d offset:%d" % (vr(VQ, 4), T + 2, L_Q))
        a.i("ds_read_b128 %s, v%d offset:%d" % (vr(VQ + 4, 4), T + 2, L_Q + 256))

        for j in range(8):
            for h in range(2):
                d = P + 2 * j + h
                a.i("v_dot2_f32_bf16 v%d, v%d, v%d, 0" % (d, KV + 4 * j, VQ + 4 * h))
                for t in range(1, 4):
                    a.i("v_dot2c_f32_bf16 v%d, v%d, v%d" % (d, KV + 4 * j + t, VQ + 4 * h + t))
        for u in range(8):
            A, B = P + u, P + u + 8
            a.i("v_add_f32_dpp v%d, v%d, v%d row_ror:8 row_mask:0xf bank_mask:0x3" % (A, A, A))
            a.i("v_add_f32_dpp v%d, v%d, v%d row_ror:8 row_mask:0xf bank_mask:0xc" % (A, B, B))
        for u in range(4):
            A, B = P + u, P + u + 4
            a.i("v_add_f32_dpp v%d, v%d, v%d row_shl:4 row_mask:0xf bank_mask:0x5" % (A, A, A))
            a.i("v_add_f32_dpp v%d, v%d, v%d row_shr:4 row_mask:0xf bank_mask:0xa" % (A, B, B))
        for u in range(2):
            A, B = P + u, P + u + 2
            a.i("v_add_f32_dpp v%d, v%d, v%d quad_perm:[2,3,0,1] row_mask:0xf bank_mask:0xf" % (A, A, A))
            a.i("v_add_f32_dpp v%d, v%d, v%d quad_perm:[2,3,0,1] row_mask:0xf bank_mask:0xf" % (B, B, B))
            a.i("v_cndmask_b32 v%d, v%d, v%d, s[%d:%d]" % (A, A, B, S_M1, S_M1 + 1))
        A, B = P, P + 1
        a.i("v_add_f32_dpp v%d, v%d, v%d quad_perm:[1,0,3,2] row_mask:0xf bank_mask:0xf" % (A, A, A))
        a.i("v_add_f32_dpp v%d, v%d, v%d quad_perm:[1,0,3,2] row_mask:0xf bank_mask:0xf" % (B, B, B))
        a.i("v_cndmask_b32 v%d, v%d, v%d, s[%d:%d]" % (A, A, B, S_M0, S_M0 + 1))
        s_ = P
        self.bf16r(s_, s_)
        a.i("v_mul_f32 v%d, %s, v%d" % (s_, f32(SCALE), s_))
        self.bf16r(s_, s_)
        m, t = P + 1, P + 2
        a.i("v_max_f32_dpp v%d, v%d, v%d quad_perm:[2,3,0,1] row_mask:0xf bank_mask:0xf" % (m, s_, s_))
        a.i("v_max_f32_dpp v%d, v%d, v%d row_ror:4 row_mask:0xf bank_mask:0xf" % (m, m, m))
        a.i("v_max_f32_dpp v%d, v%d, v%d row_ror:8 row_mask:0xf bank_mask:0xf" % (m, m, m))
        self.allreduce16_32(m, t, "v_max_f32")
        pp = P + 3
        a.i("v_sub_f32 v%d, v%d, v%d" % (pp, s_, m))
        a.i("v_mul_f32 v%d, %s, v%d" % (pp, f32(LOG2E), pp))
        a.i("v_exp_f32 v%d, v%d" % (pp, pp))
        ls = P + 4
        a.i("v_add_f32_dpp v%d, v%d, v%d quad_perm:[2,3,0,1] row_mask:0xf bank_mask:0xf" % (ls, pp, pp))
        a.i("v_add_f32_dpp v%d, v%d, v%d row_ror:4 row_mask:0xf bank_mask:0xf" % (ls, ls, ls))
        a.i("v_add_f32_dpp v%d, v%d, v%d row_ror:8 row_mask:0xf bank_mask:0xf" % (ls, ls, ls))
        self.allreduce16_32(ls, t, "v_add_f32")
        self.get_tag_from_lds(T + 12)
        G0 = T + 16
        for gq in (G0, G0 + 4):
            a.i("v_mov_b32 v%d, s%d" % (gq + 2, S_T))
            a.i("v_mov_b32 v%d, s%d" % (gq + 3, S_T + 1))
        SG = T + 28
        a.i("v_mov_b32 v%d, s%d" % (SG + 2, S_T))
        a.i("v_mov_b32 v%d, s%d" % (SG + 3, S_T + 1))
        go, t3 = T + 24, T + 25
        a.i("v_lshrrev_b32 v%d, 5, v1" % go)
        a.i("v_lshlrev_b32 v%d, 14, v%d" % (go, go))
        a.i("v_and_b32 v%d, 15, v1" % t3)
        a.i("v_lshl_add_u32 v%d, v%d, 6, v%d" % (go, t3, go))
        a.i("v_bfe_u32 v%d, v1, 4, 1" % t3)
        a.i("v_lshl_add_u32 v%d, v%d, 5, v%d" % (go, t3, go))
        gs = T + 26
        a.i("v_lshrrev_b32 v%d, 5, v1" % gs)
        a.i("v_lshlrev_b32 v%d, 8, v%d" % (gs, gs))
        a.i("s_lshr_b32 s%d, s2, 4" % (sb + 4))
        a.i("s_lshl_b32 s%d, s%d, 5" % (sb + 4, sb + 4))
        a.i("s_and_b32 s%d, s2, 15" % (sb + 5))
        a.i("s_add_u32 s%d, s%d, s%d" % (sb + 4, sb + 4, sb + 5))
        a.i("s_lshl_b32 s%d, s%d, 10" % (sb + 5, sb + 4))
        a.i("s_add_u32 s%d, s%d, 0x%x" % (sb + 5, sb + 5, WS_XO))
        a.i("s_lshl_b32 s%d, s%d, 4" % (sb + 6, sb + 4))
        a.i("s_add_u32 s%d, s%d, 0x%x" % (sb + 6, sb + 6, WS_XOS))
        hs = T + 13
        a.i("v_lshrrev_b32 v%d, 5, v1" % hs)
        a.i("v_lshlrev_b32 v%d, 3, v%d" % (hs, hs))
        self.stamp(3)
        ulo, uhi = P + 6, P + 7
        for j in range(8):
            for t4 in range(4):
                vv = KV + 4 * (8 + j) + t4
                a.i("v_lshlrev_b32 v%d, 16, v%d" % (ulo, vv))
                a.i("v_and_b32 v%d, 0xffff0000, v%d" % (uhi, vv))
                for h in range(2):
                    for e, u in ((0, ulo), (1, uhi)):
                        d = ACC + 8 * h + 2 * t4 + e
                        if j == 0:
                            a.i("v_mul_f32_dpp v%d, v%d, v%d row_newbcast:%d row_mask:0xf bank_mask:0xf" % (d, pp, u, 2 * j + h))
                        else:
                            a.i("v_fmac_f32_dpp v%d, v%d, v%d row_newbcast:%d row_mask:0xf bank_mask:0xf" % (d, pp, u, 2 * j + h))
        self.stamp(4)
        for e in range(8):
            a.i("v_permlane32_swap_b32 v%d, v%d" % (ACC + e, ACC + 8 + e))
        for e in range(8):
            a.i("v_add_f32 v%d, v%d, v%d" % (ACC + e, ACC + e, ACC + 8 + e))
        for e in range(4):
            a.i("v_permlane16_swap_b32 v%d, v%d" % (ACC + e, ACC + 4 + e))
        for e in range(4):
            a.i("v_add_f32 v%d, v%d, v%d" % (ACC + e, ACC + e, ACC + 4 + e))
        ad, t2 = T + 4, T + 5
        a.i("v_lshrrev_b32 v%d, 5, v1" % ad)
        a.i("v_lshlrev_b32 v%d, 9, v%d" % (ad, ad))
        a.i("v_and_b32 v%d, 15, v1" % t2)
        a.i("v_lshl_add_u32 v%d, v%d, 5, v%d" % (ad, t2, ad))
        a.i("v_bfe_u32 v%d, v1, 4, 1" % t2)
        a.i("v_lshl_add_u32 v%d, v%d, 4, v%d" % (ad, t2, ad))
        a.i("s_lshl_b32 s%d, s3, 10" % (sb + 2))
        a.i("v_add_u32 v%d, s%d, v%d" % (T + 6, sb + 2, ad))
        a.i("ds_write_b128 v%d, %s offset:%d" % (T + 6, vr(ACC, 4), L_PART))
        a.i("v_mov_b32 v%d, v%d" % (T + 8, m))
        a.i("v_mov_b32 v%d, v%d" % (T + 9, ls))
        a.i("v_lshlrev_b32 v%d, 3, v1" % (T + 7))
        a.i("s_lshl_b32 s%d, s3, 4" % (sb + 2))
        a.i("v_add_u32 v%d, s%d, v%d" % (T + 7, sb + 2, T + 7))
        a.i("s_mov_b64 exec, 3")
        a.i("ds_write_b64 v%d, v[%d:%d] offset:%d" % (T + 7, T + 8, T + 9, L_STATS))
        a.i("s_mov_b64 exec, 1")
        a.waitcnt(lgkm=0)
        a.i("v_mov_b32 v%d, 0" % (T + 10))
        a.i("v_mov_b32 v%d, 1" % (T + 11))
        a.i("ds_add_rtn_u32 v%d, v%d, v%d offset:%d" % (T + 12, T + 10, T + 11, LF_ARRIVE))
        a.i("s_mov_b64 exec, -1")
        a.i("v_readfirstlane_b32 s%d, v%d" % (sb + 2, T + 12))
        self.stamp(5)
        a.i("s_cmp_lg_u32 s%d, 7" % (sb + 2))
        a.branch("s_cbranch_scc1", "L_exit_" + self.kn)
        ST = KV
        for w_ in range(8):
            a.i("ds_read_b64 v[%d:%d], v%d offset:%d" % (ST + 2 * w_, ST + 2 * w_ + 1, hs, L_STATS + 16 * w_))
        PR = KV + 16
        for w_ in range(8):
            a.i("ds_read_b128 %s, v%d offset:%d" % (vr(PR + 4 * w_, 4), ad, L_PART + 1024 * w_))
        M, Ls = T + 14, T + 15
        a.i("v_max3_f32 v%d, v%d, v%d, v%d" % (M, ST, ST + 2, ST + 4))
        a.i("v_max3_f32 v%d, v%d, v%d, v%d" % (M, M, ST + 6, ST + 8))
        a.i("v_max3_f32 v%d, v%d, v%d, v%d" % (M, M, ST + 10, ST + 12))
        a.i("v_max_f32 v%d, v%d, v%d" % (M, M, ST + 14))
        for w_ in range(8):
            r = ST + 2 * w_
            a.i("v_sub_f32 v%d, v%d, v%d" % (r, r, M))
            a.i("v_mul_f32 v%d, %s, v%d" % (r, f32(LOG2E), r))
            a.i("v_exp_f32 v%d, v%d" % (r, r))
        a.i("v_mul_f32 v%d, v%d, v%d" % (Ls, ST, ST + 1))
        for w_ in range(1, 8):
            a.i("v_fmac_f32 v%d, v%d, v%d" % (Ls, ST + 2 * w_, ST + 2 * w_ + 1))
        for k in range(4):
            d = G0 + (k >> 1) * 4 + (k & 1)
            a.i("v_mul_f32 v%d, v%d, v%d" % (d, ST, PR + k))
            for w_ in range(1, 8):
                a.i("v_fmac_f32 v%d, v%d, v%d" % (d, ST + 2 * w_, PR + 4 * w_ + k))
        a.i("v_mov_b32 v%d, v%d" % (SG, M))
        a.i("v_mov_b32 v%d, v%d" % (SG + 1, Ls))
        a.i("buffer_store_dwordx4 %s, v%d, %s, s%d offen sc1" % (vr(G0, 4), go, srd(S_WS), sb + 5))
        a.i("buffer_store_dwordx4 %s, v%d, %s, s%d offen offset:16 sc1" % (vr(G0 + 4, 4), go, srd(S_WS), sb + 5))
        a.i("s_mov_b32 exec_lo, 1")
        a.i("s_mov_b32 exec_hi, 1")
        a.i("buffer_store_dwordx4 %s, v%d, %s, s%d offen sc1" % (vr(SG, 4), gs, srd(S_WS), sb + 6))
        a.i("s_mov_b64 exec, -1")
        if gated:
            a.i("v_mov_b32 v%d, 0" % (T + 2))
            a.i("v_mov_b32 v%d, 1" % (T + 3))
            a.i("ds_write_b32 v%d, v%d offset:%d" % (T + 2, T + 3, LF_ATTDONE))
        self.stamp(6)

    def kernel(self, name, stages, fused):
        a = self.a
        self.kn = name
        self.fused = fused
        a.raw(kernel_header(name))
        a.hist = []
        a.forget_pending()
        self.prologue()
        lt = self.L("twave")
        a.i("s_cmp_ge_u32 s3, 8")
        a.branch("s_cbranch_scc1", lt)
        if fused:
            a.i("s_barrier")
        if "A" in stages:
            self.a_wave(gated=True if ("X" in stages) else False)
        a.branch("s_branch", "L_exit_" + name)
        a.label(lt)
        a.forget_pending()
        sscr = S_SCR
        need_ln = ("Q" in stages) or ("G" in stages)
        gated = fused
        lt1, lt2, lt3 = self.L("t1"), self.L("t2"), self.L("t3")
        a.i("s_cmp_lg_u32 s3, 8")
        a.branch("s_cbranch_scc1", lt1)
        if "Q" in stages:
            self.q_task()
        else:
            ve = self.VP + 60
            self.tag_acquire_issue(ve)
            self.tag_acquire_finish(ve)
            self.scratch_base(sscr)
        if "X" in stages:
            self.x1_control()
        if "E" in stages:
            a.i("s_mov_b32 s%d, s2" % (S_TASK))
            self.e_task(S_TASK, gated)
        a.branch("s_branch", "L_exit_" + name)
        a.label(lt1)
        a.forget_pending()
        if fused:
            a.i("s_barrier")
        self.stamp(0)
        self.scratch_base(sscr)
        if "G" in stages:
            vx = self.VP + 40
            self.ln_issue(vx)
            self.ln_compute(vx, self.VP, sscr)
        a.i("s_cmp_lg_u32 s3, 9")
        a.branch("s_cbranch_scc1", lt2)
        if "G" in stages:
            a.i("s_lshl_b32 s%d, s2, 1" % (S_TASK))
            self.g_task(S_TASK, gated)
        if "D" in stages:
            a.i("s_mov_b32 s%d, s2" % (S_TASK))
            self.d_task(S_TASK, gated)
        a.branch("s_branch", "L_exit_" + name)
        a.label(lt2)
        a.forget_pending()
        a.i("s_cmp_lg_u32 s3, 10")
        a.branch("s_cbranch_scc1", lt3)
        if "G" in stages:
            a.i("s_lshl_b32 s%d, s2, 1" % (S_TASK))
            a.i("s_add_u32 s%d, s%d, 1" % (S_TASK, S_TASK))
            self.g_task(S_TASK, gated)
        le2, ld2 = self.L("e2"), self.L("d2")
        if "E" in stages:
            a.i("s_cmp_ge_u32 s2, 32")
            a.branch("s_cbranch_scc1", le2)
            a.i("s_add_u32 s%d, s2, 256" % (S_TASK))
            self.e_task(S_TASK, gated)
            a.branch("s_branch", "L_exit_" + name)
            a.label(le2)
            a.forget_pending()
        if "D" in stages:
            a.i("s_cmp_lt_u32 s2, 32")
            a.branch("s_cbranch_scc1", "L_exit_" + name)
            a.i("s_cmp_ge_u32 s2, 100")
            a.branch("s_cbranch_scc1", "L_exit_" + name)
            a.i("s_add_u32 s%d, s2, %d" % (S_TASK, 256 - 32))
            self.d_task(S_TASK, gated)
        a.branch("s_branch", "L_exit_" + name)
        a.label(lt3)
        a.forget_pending()
        lg3 = self.L("g3")
        if "G" in stages:
            a.i("s_cmp_lt_u32 s2, 100")
            a.branch("s_cbranch_scc1", lg3)
            a.i("s_cmp_ge_u32 s2, 164")
            a.branch("s_cbranch_scc1", lg3)
            a.i("s_add_u32 s%d, s2, %d" % (S_TASK, 512 - 100))
            self.g_task(S_TASK, gated)
            a.branch("s_branch", "L_exit_" + name)
            a.label(lg3)
            a.forget_pending()
            if gated:
                self.lds_inc(LF_GISSUED, self.VP + 52)
        if "R" in stages:
            a.i("s_cmp_lt_u32 s2, 164")
            a.branch("s_cbranch_scc1", "L_exit_" + name)
            a.i("s_cmp_ge_u32 s2, 200")
            a.branch("s_cbranch_scc1", "L_exit_" + name)
            a.i("s_sub_u32 s%d, s2, 164" % (S_TASK))
            self.r_task(S_TASK, gated)
        a.label("L_exit_" + name)
        a.forget_pending()
        if self.p.get("instr"):
            a.i("s_mul_i32 s96, s2, %d" % NWAVES)
            a.i("s_add_u32 s96, s96, s3")
            a.i("s_lshl_b32 s96, s96, 8")
            a.i("s_add_u32 s96, s96, 0x%x" % WS_STAMP)
            a.i("v_lshlrev_b32 v166, 2, v1")
            a.i("buffer_store_dword v167, v166, %s, s96 offen" % srd(S_WS))
        a.label("L_end_" + name)
        a.endpgm()


DEFAULT_PARAMS = dict(win_a=2, win_g=None, spin_lds=0x100000, spin_glb=0x8000)


def build(mode, params=None, out=None):
    p = dict(DEFAULT_PARAMS)
    if params:
        p.update(params)
    g = Gen(p)
    a = g.a
    if mode == "fused":
        kernels = [(KNAME + "_kernel", set("QGXADER"), True)]
    else:
        kernels = [("k1_kernel", set("QG"), False), ("k2_kernel", set("XAD"), False),
                   ("k3_kernel", set("E"), False), ("k4_kernel", set("R"), False)]
    a.raw("; fused decode layer: attention (sliding window 4096) + SwiGLU FFN.  generated by gen/gen_fused.py")
    if mode == "fused":
        a.raw("; @launch grid=(256,1,1) block=(%d,1,1) lds=%d" % (NWAVES * 64, LDS_BYTES))
    else:
        for (n, _, _) in kernels:
            a.raw("; @launch kernel=%s grid=(256,1,1) block=(%d,1,1) lds=%d" % (n, NWAVES * 64, LDS_BYTES))
    a.raw('.amdgcn_target "amdgcn-amd-amdhsa--gfx950"')
    a.raw(".text")
    for (n, st, fz) in kernels:
        g.kernel(n, st, fz)
    a.raw('.section .rodata,"a"')
    for (n, _, _) in kernels:
        a.raw(".p2align 6")
        a.raw(kernel_descriptor(n, 168, 102))
    txt = a.text()
    if out:
        open(out, "w").write(txt)
    return txt, a


if __name__ == "__main__":
    mode = sys.argv[1]
    out = sys.argv[2]
    params = {}
    for kv in sys.argv[3:]:
        k, v = kv.split("=")
        params[k] = None if v == "None" else int(v, 0)
    txt, a = build(mode, params, out)
    print("instructions:", a.n_ins, "stats:", a.stats)
```

```python
import struct
import sys

sys.path.insert(0, "gen")
from asmgen import Asm, kernel_header, kernel_descriptor
from layout import *

KNAME = "recurrent_scan__sliding_block_cached__swiglu_ffn__decode"


def f32(x):
    return "0x%08x" % struct.unpack("<I", struct.pack("<f", x))[0]


S_X, S_K, S_V, S_WQ, S_WO, S_WG, S_WU, S_WD, S_OUT, S_WS = 8, 12, 16, 20, 24, 28, 32, 36, 40, 44
S_T = 48
S_SELLO, S_SELHI = 50, 51
S_M1, S_M0 = 52, 54
S_LO32 = 56
S_SPIN = 58
S_SCR = 60
S_TASK = 61
S_LWT = 62
S_MUL = 63
S_MASK = 64
S_TMP = 66


def srd(b):
    return "s[%d:%d]" % (b, b + 3)


def vr(b, n=1):
    return "v%d" % b if n == 1 else "v[%d:%d]" % (b, b + n - 1)


class Gen:
    def __init__(self, params):
        self.p = params
        self.a = Asm()
        self.lbl = 0

    def L(self, base):
        self.lbl += 1
        return "L_%s_%d" % (base, self.lbl)

    def bf16r(self, dst, src):
        a = self.a
        a.i("v_cvt_pk_bf16_f32 v%d, v%d, v%d" % (dst, src, src))
        a.i("v_lshlrev_b32 v%d, 16, v%d" % (dst, dst))

    def stamp(self, k):
        if not self.p.get("instr"):
            return
        a = self.a
        a.i("s_memrealtime s[96:97]")
        a.waitcnt(lgkm=0)
        a.i("v_writelane_b32 v167, s96, %d" % k)

    def lds_wait_ge(self, off, val, vtmp, stmp):
        a = self.a
        lw, ld = self.L("lw"), self.L("lwd")
        a.i("v_mov_b32 v%d, 0" % (vtmp + 1))
        a.i("s_mov_b32 s%d, 0" % S_SPIN)
        a.label(lw)
        a.i("ds_read_b32 v%d, v%d offset:%d" % (vtmp, vtmp + 1, off))
        a.i("s_add_u32 s%d, s%d, 1" % (S_SPIN, S_SPIN))
        a.i("v_readfirstlane_b32 s%d, v%d" % (stmp, vtmp))
        a.i("s_cmp_ge_u32 s%d, %d" % (stmp, val))
        a.branch("s_cbranch_scc1", ld)
        a.i("s_sleep 1")
        a.i("s_cmp_lt_u32 s%d, 0x%x" % (S_SPIN, self.p["spin_lds"]))
        a.branch("s_cbranch_scc1", lw)
        a.label(ld)

    def lds_inc(self, off, vtmp):
        a = self.a
        a.i("v_mov_b32 v%d, 0" % vtmp)
        a.i("v_mov_b32 v%d, 1" % (vtmp + 1))
        a.i("s_mov_b64 exec, 1")
        a.i("ds_add_u32 v%d, v%d offset:%d" % (vtmp, vtmp + 1, off))
        a.i("s_mov_b64 exec, -1")

    def get_tag_from_lds(self, vtmp):
        a = self.a
        self.lds_wait_ge(LF_TVALID, 1, vtmp, S_LWT)
        a.i("v_mov_b32 v%d, 0" % (vtmp + 2))
        a.i("ds_read_b64 v[%d:%d], v%d offset:%d" % (vtmp, vtmp + 1, vtmp + 2, LF_TLO))
        a.i("v_readfirstlane_b32 s%d, v%d" % (S_T, vtmp))
        a.i("v_readfirstlane_b32 s%d, v%d" % (S_T + 1, vtmp + 1))

    def allreduce16_32(self, x, t, op):
        a = self.a
        a.i("v_mov_b32 v%d, v%d" % (t, x))
        a.i("v_permlane16_swap_b32 v%d, v%d" % (x, t))
        a.i("%s v%d, v%d, v%d" % (op, x, x, t))
        a.i("v_mov_b32 v%d, v%d" % (t, x))
        a.i("v_permlane32_swap_b32 v%d, v%d" % (x, t))
        a.i("%s v%d, v%d, v%d" % (op, x, x, t))

    def wave_allreduce_add(self, x, t):
        a = self.a
        a.i("v_add_f32_dpp v%d, v%d, v%d quad_perm:[1,0,3,2] row_mask:0xf bank_mask:0xf" % (x, x, x))
        a.i("v_add_f32_dpp v%d, v%d, v%d quad_perm:[2,3,0,1] row_mask:0xf bank_mask:0xf" % (x, x, x))
        a.i("v_add_f32_dpp v%d, v%d, v%d row_half_mirror row_mask:0xf bank_mask:0xf" % (x, x, x))
        a.i("v_add_f32_dpp v%d, v%d, v%d row_mirror row_mask:0xf bank_mask:0xf" % (x, x, x))
        self.allreduce16_32(x, t, "v_add_f32")

    def validate(self, regs, smask):
        a = self.a
        first = True
        for r in regs:
            if first:
                a.i("v_cmp_ne_u64 s[%d:%d], s[%d:%d], v[%d:%d]" % (smask, smask + 1, S_T, S_T + 1, r + 2, r + 3))
                first = False
            else:
                a.i("v_cmp_ne_u64 vcc, s[%d:%d], v[%d:%d]" % (S_T, S_T + 1, r + 2, r + 3))
                a.i("s_or_b64 s[%d:%d], s[%d:%d], vcc" % (smask, smask + 1, smask, smask + 1))

    def poll(self, issue_fn, regs, name):
        a = self.a
        lr, lo = self.L(name + "_r"), self.L(name + "_ok")
        smask = S_MASK
        a.i("s_mov_b32 s%d, 0" % S_SPIN)
        a.label(lr)
        issue_fn()
        a.i("s_add_u32 s%d, s%d, 1" % (S_SPIN, S_SPIN))
        a.waitcnt(vm=0)
        self.validate(regs, smask)
        a.i("s_cmp_eq_u64 s[%d:%d], 0" % (smask, smask + 1))
        a.branch("s_cbranch_scc1", lo)
        a.i("s_cmp_lt_u32 s%d, 0x%x" % (S_SPIN, self.p["spin_glb"]))
        a.branch("s_cbranch_scc1", lr)
        a.label(lo)
        if self.p.get("instr"):
            a.i("v_writelane_b32 v167, s%d, %d" % (S_SPIN, {"x1": 20, "x1f": 21, "x2": 22, "x3": 23}[name]))

    def prologue(self):
        a = self.a
        if self.p.get("instr"):
            a.i("s_memrealtime s[98:99]")
        for (s, off) in ((S_X, 0), (S_K, 8), (S_V, 16), (S_WQ, 24), (S_WO, 32), (S_WG, 48), (S_WU, 56), (S_WD, 64),
                         (S_OUT, 72), (S_WS, 88)):
            a.i("s_load_dwordx2 s[%d:%d], s[0:1], %d" % (s, s + 1, off))
        a.i("v_lshrrev_b32 v2, 6, v0")
        a.i("v_and_b32 v1, 63, v0")
        a.i("v_readfirstlane_b32 s3, v2")
        a.i("s_cmp_ge_u32 s2, 256")
        a.branch("s_cbranch_scc1", "L_end_" + self.kn)
        for (s, n) in ((S_X, 1152), (S_K, 67108864), (S_V, 67108864), (S_WQ, 4718592), (S_WO, 4718592),
                       (S_WG, 5308416), (S_WU, 5308416), (S_WD, 5308416), (S_OUT, 1152), (S_WS, WS_BYTES)):
            a.i("s_mov_b32 s%d, 0x%x" % (s + 2, n))
            a.i("s_mov_b32 s%d, 0x20000" % (s + 3))
        a.i("s_mov_b32 s%d, 0x05040100" % S_SELLO)
        a.i("s_mov_b32 s%d, 0x07060302" % S_SELHI)
        a.i("s_mov_b32 s%d, 0xcccccccc" % S_M1)
        a.i("s_mov_b32 s%d, 0xcccccccc" % (S_M1 + 1))
        a.i("s_mov_b32 s%d, 0xaaaaaaaa" % S_M0)
        a.i("s_mov_b32 s%d, 0xaaaaaaaa" % (S_M0 + 1))
        a.i("s_mov_b32 s%d, -1" % S_LO32)
        a.i("s_mov_b32 s%d, 0" % (S_LO32 + 1))
        l0 = self.L("nz")
        a.i("s_cmp_lg_u32 s3, 0")
        a.branch("s_cbranch_scc1", l0)
        a.i("v_mov_b32 v3, 0")
        a.i("v_lshlrev_b32 v4, 2, v1")
        a.i("ds_write_b32 v4, v3")
        a.label(l0)
        self.t0_vm = None
        if self.early_q:
            lq = self.L("noq")
            a.waitcnt(lgkm=0)
            a.i("s_cmp_lg_u32 s3, 8")
            a.branch("s_cbranch_scc1", lq)
            self.q_task_issue()
            self.t0_vm = list(a.vm)
            a.label(lq)
            a.vm = []
        a.waitcnt(lgkm=0)
        a.i("s_barrier")
        if self.p.get("instr"):
            a.i("v_mov_b32 v167, 0")
            a.i("v_writelane_b32 v167, s98, 63")
            self.stamp(62)

    def ln_issue(self, vx):
        a = self.a
        a.i("v_lshlrev_b32 v%d, 2, v1" % (vx + 5))
        for j in range(5):
            a.i("buffer_load_dword v%d, v%d, %s, 0 offen offset:%d" % (vx + j, vx + 5, srd(S_X), j * 256))

    def ln_compute(self, vx, vt, s_scr):
        a = self.a
        lo = [vt + 2 * j for j in range(5)]
        hi = [vt + 2 * j + 1 for j in range(5)]
        for j in range(5):
            a.i("v_lshlrev_b32 v%d, 16, v%d" % (lo[j], vx + j))
            a.i("v_and_b32 v%d, 0xffff0000, v%d" % (hi[j], vx + j))
        sm, t, mean = vt + 10, vt + 11, vt + 12
        a.i("v_add_f32 v%d, v%d, v%d" % (sm, lo[0], hi[0]))
        for j in range(1, 5):
            a.i("v_add_f32 v%d, v%d, v%d" % (sm, sm, lo[j]))
            a.i("v_add_f32 v%d, v%d, v%d" % (sm, sm, hi[j]))
        self.wave_allreduce_add(sm, t)
        a.i("v_mul_f32 v%d, %s, v%d" % (mean, f32(1.0 / 576.0), sm))
        sq, d = vt + 13, vt + 14
        a.i("v_mov_b32 v%d, 0" % sq)
        for j in range(5):
            for r in (lo[j], hi[j]):
                a.i("v_sub_f32 v%d, v%d, v%d" % (d, r, mean))
                if j == 4:
                    a.i("v_cndmask_b32 v%d, 0, v%d, s[%d:%d]" % (d, d, S_LO32, S_LO32 + 1))
                a.i("v_fmac_f32 v%d, v%d, v%d" % (sq, d, d))
        self.wave_allreduce_add(sq, t)
        a.i("v_mul_f32 v%d, %s, v%d" % (sq, f32(1.0 / 576.0), sq))
        mb, vb = vt + 15, vt + 16
        self.bf16r(mb, mean)
        self.bf16r(vb, sq)
        a.i("v_add_f32 v%d, %s, v%d" % (vb, f32(1e-5), vb))
        self.bf16r(vb, vb)
        a.i("v_sqrt_f32 v%d, v%d" % (vb, vb))
        self.bf16r(vb, vb)
        inv = vt + 17
        a.i("v_rcp_f32 v%d, v%d" % (inv, vb))
        ad, t2 = vt + 18, vt + 19
        a.i("v_lshrrev_b32 v%d, 3, v1" % ad)
        a.i("v_lshlrev_b32 v%d, 5, v%d" % (ad, ad))
        a.i("v_and_b32 v%d, 3, v1" % t2)
        a.i("v_lshl_add_u32 v%d, v%d, 3, v%d" % (ad, t2, ad))
        a.i("v_bfe_u32 v%d, v1, 2, 1" % t2)
        a.i("v_lshl_add_u32 v%d, v%d, 1, v%d" % (ad, t2, ad))
        a.i("v_add_u32 v%d, s%d, v%d" % (ad, s_scr, ad))
        q0, e = vt + 20, vt + 21
        for j in range(5):
            for r in (lo[j], hi[j]):
                a.i("v_sub_f32 v%d, v%d, v%d" % (r, r, mb))
            a.i("v_cvt_pk_bf16_f32 v%d, v%d, v%d" % (t, lo[j], hi[j]))
            a.i("v_lshlrev_b32 v%d, 16, v%d" % (lo[j], t))
            a.i("v_and_b32 v%d, 0xffff0000, v%d" % (hi[j], t))
            for r in (lo[j], hi[j]):
                a.i("v_mul_f32 v%d, v%d, v%d" % (q0, r, inv))
                a.i("v_fma_f32 v%d, -v%d, v%d, v%d" % (e, q0, vb, r))
                a.i("v_fma_f32 v%d, v%d, v%d, v%d" % (r, e, inv, q0))
            a.i("v_cvt_pk_bf16_f32 v%d, v%d, v%d" % (t, lo[j], hi[j]))
            a.i("ds_write_b16 v%d, v%d offset:%d" % (ad, t, j * 256))
            a.i("ds_write_b16_d16_hi v%d, v%d offset:%d" % (ad, t, j * 256 + 4))

    def mv_voff(self, dst, pitch):
        a = self.a
        a.i("v_lshrrev_b32 v%d, 3, v1" % dst)
        a.i("s_mov_b32 s%d, %d" % (S_MUL, pitch))
        a.i("v_mul_lo_u32 v%d, v%d, s%d" % (dst, dst, S_MUL))
        a.i("v_and_b32 v%d, 7, v1" % (dst + 1))
        a.i("v_lshl_add_u32 v%d, v%d, 4, v%d" % (dst, dst + 1, dst))

    def mv_issue(self, s_srd, s_base, pitch, nload, W, voff, window=None):
        a = self.a
        for i in range(nload):
            if window is not None and i >= window:
                a.waitcnt(vm=window - 1)
            a.i("buffer_load_dwordx4 %s, v%d, %s, s%d offen nt" % (vr(W + 4 * i, 4), voff, srd(s_srd), s_base))
            if i + 1 < nload:
                a.i("s_add_u32 s%d, s%d, %d" % (s_base, s_base, 8 * pitch))

    def mv_perm(self, nload, W, tmp):
        a = self.a
        for p in range(nload // 2):
            for t in range(4):
                A = W + 8 * p + t
                B = W + 8 * p + 4 + t
                a.i("v_perm_b32 v%d, v%d, v%d, s%d" % (tmp, B, A, S_SELLO))
                a.i("v_perm_b32 v%d, v%d, v%d, s%d" % (B, B, A, S_SELHI))
                a.i("v_mov_b32 v%d, v%d" % (A, tmp))

    def mv_read_apairs(self, npair, ap, s_addr_base, vtmp):
        a = self.a
        a.i("v_lshrrev_b32 v%d, 3, v1" % vtmp)
        a.i("v_lshlrev_b32 v%d, 2, v%d" % (vtmp, vtmp))
        a.i("v_add_u32 v%d, s%d, v%d" % (vtmp, s_addr_base, vtmp))
        for p in range(npair):
            a.i("ds_read_b32 v%d, v%d offset:%d" % (ap + p, vtmp, p * 32))

    def mv_dot(self, nload, W, ap, acc):
        a = self.a
        for p in range(nload // 2):
            for t in range(4):
                A = W + 8 * p + t
                B = W + 8 * p + 4 + t
                if p == 0:
                    a.i("v_dot2_f32_bf16 v%d, v%d, v%d, 0" % (acc + 2 * t, A, ap))
                    a.i("v_dot2_f32_bf16 v%d, v%d, v%d, 0" % (acc + 2 * t + 1, B, ap))
                else:
                    a.i("v_dot2c_f32_bf16 v%d, v%d, v%d" % (acc + 2 * t, A, ap + p))
                    a.i("v_dot2c_f32_bf16 v%d, v%d, v%d" % (acc + 2 * t + 1, B, ap + p))

    def mv_perm_dot(self, nload, W, ap, acc, tmp):
        a = self.a
        for p in range(nload // 2):
            for t in range(4):
                A = W + 8 * p + t
                B = W + 8 * p + 4 + t
                a.i("v_perm_b32 v%d, v%d, v%d, s%d" % (tmp, B, A, S_SELLO))
                a.i("v_perm_b32 v%d, v%d, v%d, s%d" % (tmp + 1, B, A, S_SELHI))
                if p == 0:
                    a.i("v_dot2_f32_bf16 v%d, v%d, v%d, 0" % (acc + 2 * t, tmp, ap))
                    a.i("v_dot2_f32_bf16 v%d, v%d, v%d, 0" % (acc + 2 * t + 1, tmp + 1, ap))
                else:
                    a.i("v_dot2c_f32_bf16 v%d, v%d, v%d" % (acc + 2 * t, tmp, ap + p))
                    a.i("v_dot2c_f32_bf16 v%d, v%d, v%d" % (acc + 2 * t + 1, tmp + 1, ap + p))

    def mv_reduce_publish(self, acc, s_off, vtmp):
        a = self.a
        for k in range(4):
            a.i("v_permlane32_swap_b32 v%d, v%d" % (acc + k, acc + k + 4))
        for k in range(4):
            a.i("v_add_f32 v%d, v%d, v%d" % (acc + k, acc + k, acc + k + 4))
        for k in range(2):
            a.i("v_permlane16_swap_b32 v%d, v%d" % (acc + k, acc + k + 2))
        for k in range(2):
            a.i("v_add_f32 v%d, v%d, v%d" % (acc + k, acc + k, acc + k + 2))
        a.i("v_add_f32_dpp v%d, v%d, v%d row_ror:8 row_mask:0xf bank_mask:0x3" % (acc, acc, acc))
        a.i("v_add_f32_dpp v%d, v%d, v%d row_ror:8 row_mask:0xf bank_mask:0xc" % (acc, acc + 1, acc + 1))
        g = vtmp
        a.i("v_mov_b32 v%d, v%d" % (g, acc))
        a.i("v_mov_b32_dpp v%d, v%d row_ror:8 row_mask:0xf bank_mask:0xf" % (g + 1, acc))
        a.i("v_mov_b32 v%d, s%d" % (g + 2, S_T))
        a.i("v_mov_b32 v%d, s%d" % (g + 3, S_T + 1))
        ad, t = g + 4, g + 5
        a.i("v_and_b32 v%d, 7, v1" % ad)
        a.i("v_lshlrev_b32 v%d, 6, v%d" % (ad, ad))
        a.i("v_lshrrev_b32 v%d, 5, v1" % t)
        a.i("v_lshl_add_u32 v%d, v%d, 5, v%d" % (ad, t, ad))
        a.i("v_bfe_u32 v%d, v1, 4, 1" % t)
        a.i("v_lshl_add_u32 v%d, v%d, 4, v%d" % (ad, t, ad))
        a.i("s_mov_b32 exec_lo, 0x00ff00ff")
        a.i("s_mov_b32 exec_hi, 0x00ff00ff")
        a.i("buffer_store_dwordx4 %s, v%d, %s, s%d offen sc1" % (vr(g, 4), ad, srd(S_WS), s_off))
        a.i("s_mov_b64 exec, -1")

    def scratch_base(self, sdst):
        a = self.a
        a.i("s_mul_i32 s%d, s3, %d" % (sdst, L_SCR_STRIDE))
        a.i("s_add_u32 s%d, s%d, %d" % (sdst, sdst, L_SCR))

    def div9(self, q, r, x):
        a = self.a
        a.i("s_mul_i32 s%d, s%d, 7282" % (q, x))
        a.i("s_lshr_b32 s%d, s%d, 16" % (q, q))
        a.i("s_mul_i32 s%d, s%d, 9" % (r, q))
        a.i("s_sub_u32 s%d, s%d, s%d" % (r, x, r))

    VW = 8
    VP = 80
    VACC = 152
    VAP = 160

    def tag_acquire_issue(self, ve):
        a = self.a
        a.i("v_mov_b32 v%d, 0" % (ve + 2))
        a.i("buffer_load_dwordx2 v[%d:%d], v%d, %s, 0 offen offset:%d sc1" % (ve, ve + 1, ve + 2, srd(S_WS), WS_EPOCH))

    def tag_acquire_finish(self, ve):
        a = self.a
        a.i("v_add_co_u32 v%d, vcc, 1, v%d" % (ve, ve))
        a.i("v_addc_co_u32 v%d, vcc, 0, v%d, vcc" % (ve + 1, ve + 1))
        a.i("v_readfirstlane_b32 s%d, v%d" % (S_T, ve))
        a.i("v_readfirstlane_b32 s%d, v%d" % (S_T + 1, ve + 1))
        a.i("v_mov_b32 v%d, 0" % (ve + 2))
        a.i("ds_write_b64 v%d, v[%d:%d] offset:%d" % (ve + 2, ve, ve + 1, LF_TLO))
        a.waitcnt(lgkm=0)
        a.i("v_mov_b32 v%d, 1" % (ve + 3))
        a.i("ds_write_b32 v%d, v%d offset:%d" % (ve + 2, ve + 3, LF_TVALID))

    def q_task_issue(self):
        a = self.a
        W, VP, ACC = self.VW, self.VP, self.VACC
        sb, sscr, so = S_TMP, S_SCR, S_TMP + 2
        ve = VP + 60
        self.tag_acquire_issue(ve)
        vx = VP + 40
        self.ln_issue(vx)
        a.i("s_and_b32 s%d, s2, 3" % sb)
        a.i("s_lshr_b32 s%d, s2, 4" % so)
        a.i("s_lshl_b32 s%d, s%d, 2" % (so, so))
        a.i("s_add_u32 s%d, s%d, s%d" % (so, so, sb))
        a.i("s_lshl_b32 s%d, s%d, 7" % (sb, so))
        a.i("s_bfe_u32 s%d, s2, 0x20002" % (so + 1))
        a.i("s_mul_i32 s%d, s%d, %d" % (so + 2, so + 1, 144 * 8192))
        a.i("s_add_u32 s%d, s%d, s%d" % (sb, sb, so + 2))
        voff = VP + 50
        self.mv_voff(voff, 8192)
        self.mv_issue(S_WQ, sb, 8192, 18, W, voff)

    def q_task(self):
        a = self.a
        W, VP, ACC = self.VW, self.VP, self.VACC
        sb, sscr, so = S_TMP, S_SCR, S_TMP + 2
        ve = VP + 60
        vx = VP + 40
        self.stamp(1)
        self.tag_acquire_finish(ve)
        self.scratch_base(sscr)
        self.ln_compute(vx, VP, sscr)
        self.stamp(2)
        a.i("s_mul_i32 s%d, s%d, %d" % (so + 2, so + 1, 9 * 32))
        a.i("s_add_u32 s%d, s%d, s%d" % (so + 2, so + 2, sscr))
        ap = VP + 24
        self.mv_read_apairs(9, ap, so + 2, VP + 34)
        self.mv_perm_dot(18, W, ap, ACC, VP + 34)
        self.stamp(3)
        a.i("s_lshl_b32 s%d, s%d, 2" % (so, so))
        a.i("s_add_u32 s%d, s%d, s%d" % (so, so, so + 1))
        a.i("s_lshl_b32 s%d, s%d, 9" % (so, so))
        a.i("s_add_u32 s%d, s%d, 0x%x" % (so, so, WS_XQ))
        self.mv_reduce_publish(ACC, so, VP + 36)
        self.stamp(4)

    def x1_control(self):
        a = self.a
        VP = self.VP
        sb = S_TMP
        a.i("s_lshr_b32 s%d, s2, 4" % sb)
        a.i("s_lshl_b32 s%d, s%d, 13" % (sb, sb))
        a.i("s_add_u32 s%d, s%d, 0x%x" % (sb, sb, WS_XQ))
        a.i("s_add_u32 s%d, s%d, 4096" % (sb + 1, sb))
        vo = VP + 40
        a.i("v_lshlrev_b32 v%d, 4, v1" % vo)
        regs = [VP + 4 * j for j in range(8)]

        def issue():
            for j in range(8):
                a.i("buffer_load_dwordx4 %s, v%d, %s, s%d offen offset:%d sc1" % (
                    vr(regs[j], 4), vo, srd(S_WS), sb + (j >> 2), (j & 3) * 1024))
        self.poll(issue, regs, "x1")
        self.stamp(5)
        t = VP + 41
        for c in range(4):
            A, B = regs[2 * c], regs[2 * c + 1]
            for e in range(2):
                a.i("v_add_f32 v%d, v%d, v%d" % (A + e, A + e, B + e))
            for e in range(2):
                a.i("v_mov_b32 v%d, v%d" % (t + e, A + e))
                a.i("v_permlane32_swap_b32 v%d, v%d" % (A + e, t + e))
                a.i("v_add_f32 v%d, v%d, v%d" % (A + e, A + e, t + e))
            a.i("v_cvt_pk_bf16_f32 v%d, v%d, v%d" % (A, A, A + 1))
        ad = VP + 44
        a.i("v_and_b32 v%d, 31, v1" % ad)
        a.i("v_lshlrev_b32 v%d, 2, v%d" % (ad, ad))
        for c in range(4):
            a.i("ds_write_b32 v%d, v%d offset:%d" % (ad, regs[2 * c], L_Q + c * 128))
        a.waitcnt(lgkm=0)
        a.i("v_mov_b32 v%d, 0" % ad)
        a.i("v_mov_b32 v%d, 1" % (ad + 1))
        a.i("ds_write_b32 v%d, v%d offset:%d" % (ad, ad + 1, LF_QREADY))
        self.stamp(6)

    def g_task(self, s_g, gated, prefetch=None):
        a = self.a
        W, ACC, ap, tmp, voff, lt, pub = 8, 144, 152, 161, 163, 164, 8
        sb, so, sscr = S_TMP + 4, S_TMP + 5, S_SCR
        a.i("s_and_b32 s%d, s%d, 3" % (so + 1, s_g))
        a.i("s_lshr_b32 s%d, s%d, 4" % (so + 2, s_g))
        a.i("s_bfe_u32 s%d, s%d, 0x10002" % (so + 3, s_g))
        a.i("s_lshl_b32 s%d, s%d, 1" % (sb, so + 2))
        a.i("s_add_u32 s%d, s%d, s%d" % (sb, sb, so + 3))
        a.i("s_lshl_b32 s%d, s%d, 7" % (sb, sb))
        a.i("s_mul_i32 s%d, s%d, %d" % (so + 4, so + 1, 144 * 9216))
        a.i("s_add_u32 s%d, s%d, s%d" % (sb, sb, so + 4))
        a.i("s_mul_i32 s%d, s%d, %d" % (so + 4, so + 1, 9 * 32))
        a.i("s_add_u32 s%d, s%d, s%d" % (so + 4, so + 4, sscr))
        self.mv_read_apairs(9, ap, so + 4, tmp)
        if gated:
            self.lds_wait_ge(LF_ISSUE, 8, lt, S_LWT)
        self.stamp(2)
        self.mv_voff(voff, 9216)
        lu, ld = self.L("gup"), self.L("gdn")
        a.i("s_bitcmp1_b32 s%d, 3" % s_g)
        a.branch("s_cbranch_scc1", lu)
        pre = list(a.vm)
        self.mv_issue(S_WG, sb, 9216, 18, W, voff, self.p["win_g"])
        a.branch("s_branch", ld)
        a.label(lu)
        a.vm = pre
        self.mv_issue(S_WU, sb, 9216, 18, W, voff, self.p["win_g"])
        a.label(ld)
        self.stamp(3)
        if prefetch is not None:
            prefetch()
        if gated:
            self.lds_inc(LF_GISSUED, lt)
        self.mv_perm_dot(18, W, ap, ACC, tmp)
        self.stamp(4)
        a.i("s_lshl_b32 s%d, s%d, 9" % (so, s_g))
        a.i("s_add_u32 s%d, s%d, 0x%x" % (so, so, WS_XF))
        self.get_tag_from_lds(lt)
        self.mv_reduce_publish(ACC, so, pub)
        self.stamp(5)

    def act_pairs_to_scratch(self, vpk, s_scr, kreg, vtmp):
        a = self.a
        ad, t = vtmp, vtmp + 1
        a.i("v_lshrrev_b32 v%d, 3, v%d" % (ad, kreg))
        a.i("v_lshlrev_b32 v%d, 5, v%d" % (ad, ad))
        a.i("v_and_b32 v%d, 3, v%d" % (t, kreg))
        a.i("v_lshl_add_u32 v%d, v%d, 3, v%d" % (ad, t, ad))
        a.i("v_bfe_u32 v%d, v%d, 2, 1" % (t, kreg))
        a.i("v_lshl_add_u32 v%d, v%d, 1, v%d" % (ad, t, ad))
        a.i("v_add_u32 v%d, s%d, v%d" % (ad, s_scr, ad))
        a.i("ds_write_b16 v%d, v%d" % (ad, vpk))
        a.i("ds_write_b16_d16_hi v%d, v%d offset:4" % (ad, vpk))

    def silu(self, dst, x, t):
        a = self.a
        a.i("v_mul_f32 v%d, %s, v%d" % (t, f32(-LOG2E), x))
        a.i("v_exp_f32 v%d, v%d" % (t, t))
        a.i("v_add_f32 v%d, 1.0, v%d" % (t, t))
        a.i("v_rcp_f32 v%d, v%d" % (t, t))
        a.i("v_mul_f32 v%d, v%d, v%d" % (dst, x, t))

    def d_issue(self, s_d, W, voff, sg, gated, lt):
        a = self.a
        sq, sr, sb, so = sg, sg + 1, sg + 2, sg + 4
        self.div9(sq, sr, s_d)
        a.i("s_mul_i32 s%d, s%d, %d" % (sb, sq, 128 * 1152))
        a.i("s_lshl_b32 s%d, s%d, 7" % (so, sr))
        a.i("s_add_u32 s%d, s%d, s%d" % (sb, sb, so))
        self.mv_voff(voff, 1152)
        if gated:
            self.lds_wait_ge(LF_GISSUED, 3, lt, S_LWT)
        self.stamp(7)
        self.mv_issue(S_WD, sb, 1152, 16, W, voff, self.p.get("win_d"))

    def d_rest(self, W, VP, ACC, sg, lt):
        a = self.a
        sq, sr, sb, so, sscr = sg, sg + 1, sg + 2, sg + 4, S_SCR
        self.get_tag_from_lds(lt)
        self.mv_perm(16, W, VP + 64)
        self.stamp(8)
        a.i("s_lshl_b32 s%d, s%d, 13" % (sb, sq))
        a.i("s_add_u32 s%d, s%d, 0x%x" % (sb, sb, WS_XF))
        a.i("s_add_u32 s%d, s%d, 4096" % (sb + 1, sb))
        vo = VP + 65
        a.i("v_lshlrev_b32 v%d, 4, v1" % vo)
        regs = [VP + 4 * j for j in range(8)]

        def issue():
            for j in range(8):
                a.i("buffer_load_dwordx4 %s, v%d, %s, s%d offen offset:%d sc1" % (
                    vr(regs[j], 4), vo, srd(S_WS), sb + (j >> 2), (j & 3) * 1024))
        self.poll(issue, regs, "x1f")
        self.stamp(10)
        t = VP + 40
        for mc in range(4):
            A, B = regs[2 * mc], regs[2 * mc + 1]
            for e in range(2):
                a.i("v_add_f32 v%d, v%d, v%d" % (A + e, A + e, B + e))
            for e in range(2):
                a.i("v_mov_b32 v%d, v%d" % (t + e, A + e))
                a.i("v_permlane32_swap_b32 v%d, v%d" % (A + e, t + e))
                a.i("v_add_f32 v%d, v%d, v%d" % (A + e, A + e, t + e))
        kreg = VP + 44
        for cgl in range(2):
            Gt, Ut = regs[2 * cgl], regs[4 + 2 * cgl]
            for e in range(2):
                self.bf16r(Gt + e, Gt + e)
                self.bf16r(Ut + e, Ut + e)
                self.silu(Gt + e, Gt + e, t)
                self.bf16r(Gt + e, Gt + e)
                a.i("v_mul_f32 v%d, v%d, v%d" % (Gt + e, Gt + e, Ut + e))
            a.i("v_cvt_pk_bf16_f32 v%d, v%d, v%d" % (Gt, Gt, Gt + 1))
            a.i("v_and_b32 v%d, 31, v1" % kreg)
            if cgl:
                a.i("v_add_u32 v%d, 32, v%d" % (kreg, kreg))
            self.act_pairs_to_scratch(Gt, sscr, kreg, VP + 46)
        ap = VP + 48
        self.mv_read_apairs(8, ap, sscr, VP + 46)
        self.mv_dot(16, W, ap, ACC)
        a.i("s_mul_i32 s%d, s%d, 36" % (so, sr))
        a.i("s_add_u32 s%d, s%d, s%d" % (so, so, sq))
        a.i("s_lshl_b32 s%d, s%d, 9" % (so, so))
        a.i("s_add_u32 s%d, s%d, 0x%x" % (so, so, WS_XD))
        self.mv_reduce_publish(ACC, so, VP + 56)
        self.stamp(11)

    def d_task(self, s_d, gated):
        self.d_issue(s_d, 8, 163, S_TMP + 12, gated, 164)
        self.d_rest(8, 80, 152, S_TMP + 12, 164)

    def e_issue(self, s_e, W, voff, sg, gated, lt):
        a = self.a
        sq, sr, sb, so = sg, sg + 1, sg + 2, sg + 4
        self.div9(sq, sr, s_e)
        a.i("s_mul_i32 s%d, s%d, %d" % (sb, sq, 128 * 1152))
        a.i("s_lshl_b32 s%d, s%d, 7" % (so, sr))
        a.i("s_add_u32 s%d, s%d, s%d" % (sb, sb, so))
        self.mv_voff(voff, 1152)
        if gated:
            self.lds_wait_ge(LF_GISSUED, 3, lt, S_LWT)
        self.stamp(7)
        self.mv_issue(S_WO, sb, 1152, 16, W, voff, self.p.get("win_e"))

    def e_rest(self, W, VP, ACC, sg, gated, lt):
        a = self.a
        sq, sr, sb, so, sscr = sg, sg + 1, sg + 2, sg + 4, S_SCR
        self.get_tag_from_lds(lt)
        self.mv_perm(16, W, VP + 68)
        self.stamp(8)
        if gated:
            self.lds_wait_ge(LF_ATTDONE, 1, lt, S_LWT)
        self.stamp(9)
        a.i("s_lshl_b32 s%d, s%d, 14" % (sb, sq))
        a.i("s_add_u32 s%d, s%d, 0x%x" % (sb, sb, WS_XO))
        for k in range(1, 4):
            a.i("s_add_u32 s%d, s%d, %d" % (sb + 10 + k, sb, 4096 * k))
        a.i("s_lshl_b32 s%d, s%d, 8" % (so, sq))
        a.i("s_add_u32 s%d, s%d, 0x%x" % (so, so, WS_XOS))
        vo, vs = VP + 68, VP + 69
        a.i("v_lshlrev_b32 v%d, 4, v1" % vo)
        a.i("v_and_b32 v%d, 15, v1" % vs)
        a.i("v_lshlrev_b32 v%d, 4, v%d" % (vs, vs))
        regs = [VP + 4 * j for j in range(16)]
        rst = VP + 64

        def issue():
            a.i("buffer_load_dwordx4 %s, v%d, %s, s%d offen sc1" % (vr(rst, 4), vs, srd(S_WS), so))
            for j in range(16):
                sreg = sb if j < 4 else sb + 10 + (j >> 2)
                a.i("buffer_load_dwordx4 %s, v%d, %s, s%d offen offset:%d sc1" % (
                    vr(regs[j], 4), vo, srd(S_WS), sreg, (j & 3) * 1024))
        self.poll(issue, [rst] + regs, "x2")
        self.stamp(10)
        M, w, t = VP + 70, VP + 71, rst + 2
        a.i("v_max_f32_dpp v%d, v%d, v%d row_ror:1 row_mask:0xf bank_mask:0xf" % (M, rst, rst))
        for k in (2, 4, 8):
            a.i("v_max_f32_dpp v%d, v%d, v%d row_ror:%d row_mask:0xf bank_mask:0xf" % (M, M, M, k))
        a.i("v_sub_f32 v%d, v%d, v%d" % (w, rst, M))
        a.i("v_mul_f32 v%d, %s, v%d" % (w, f32(LOG2E), w))
        a.i("v_exp_f32 v%d, v%d" % (w, w))
        a.i("v_mul_f32 v%d, v%d, v%d" % (t, w, rst + 1))
        for k in (1, 2, 4, 8):
            a.i("v_add_f32_dpp v%d, v%d, v%d row_ror:%d row_mask:0xf bank_mask:0xf" % (t, t, t, k))
        a.i("v_rcp_f32 v%d, v%d" % (t, t))
        a.i("v_mul_f32 v%d, v%d, v%d" % (w, w, t))
        o0, o1 = rst, rst + 1
        for j in range(16):
            if j == 0:
                a.i("v_mul_f32_dpp v%d, v%d, v%d row_newbcast:0 row_mask:0xf bank_mask:0xf" % (o0, w, regs[0]))
                a.i("v_mul_f32_dpp v%d, v%d, v%d row_newbcast:0 row_mask:0xf bank_mask:0xf" % (o1, w, regs[0] + 1))
            else:
                a.i("v_fmac_f32_dpp v%d, v%d, v%d row_newbcast:%d row_mask:0xf bank_mask:0xf" % (o0, w, regs[j], j))
                a.i("v_fmac_f32_dpp v%d, v%d, v%d row_newbcast:%d row_mask:0xf bank_mask:0xf" % (o1, w, regs[j] + 1, j))
        a.i("v_cvt_pk_bf16_f32 v%d, v%d, v%d" % (o0, o0, o1))
        self.act_pairs_to_scratch(o0, sscr, 1, VP + 70)
        ap = VP
        self.mv_read_apairs(8, ap, sscr, VP + 70)
        self.mv_dot(16, W, ap, ACC)
        a.i("s_lshl_b32 s%d, s%d, 5" % (so, sr))
        a.i("s_add_u32 s%d, s%d, s%d" % (so, so, sq))
        a.i("s_lshl_b32 s%d, s%d, 9" % (so, so))
        a.i("s_add_u32 s%d, s%d, 0x%x" % (so, so, WS_XS))
        self.mv_reduce_publish(ACC, so, VP + 8)
        self.stamp(11)

    def e_task(self, s_e, gated):
        self.e_issue(s_e, 8, 163, S_TMP + 12, gated and not self.p.get("early_e", 0), 164)
        self.e_rest(8, 80, 152, S_TMP + 12, gated, 164)

    def r_task(self, s_r, gated):
        a = self.a
        VP = self.VW
        sc, sd_, sx = S_TMP + 4, S_TMP + 5, S_TMP + 6
        a.i("s_lshr_b32 s%d, s%d, 2" % (sc, s_r))
        a.i("s_and_b32 s%d, s%d, 3" % (sd_, s_r))
        vx, vxo = VP + 60, VP + 61
        a.i("v_and_b32 v%d, 7, v1" % vxo)
        a.i("v_lshlrev_b32 v%d, 2, v%d" % (vxo, vxo))
        a.i("s_lshl_b32 s%d, s%d, 7" % (sx, sc))
        a.i("s_lshl_b32 s%d, s%d, 5" % (sx + 1, sd_))
        a.i("s_add_u32 s%d, s%d, s%d" % (sx, sx, sx + 1))
        a.i("buffer_load_dword v%d, v%d, %s, s%d offen" % (vx, vxo, srd(S_X), sx))
        self.get_tag_from_lds(VP + 64)
        if gated:
            self.lds_wait_ge(LF_ATTDONE, 1, VP + 64, S_LWT)
        ss, sf = S_TMP + 10, S_TMP + 16
        a.i("s_lshl_b32 s%d, s%d, 14" % (ss, sc))
        a.i("s_lshl_b32 s%d, s%d, 7" % (ss + 1, sd_))
        a.i("s_add_u32 s%d, s%d, s%d" % (ss, ss, ss + 1))
        a.i("s_add_u32 s%d, s%d, 0x%x" % (ss, ss, WS_XS))
        for k in range(1, 4):
            a.i("s_add_u32 s%d, s%d, %d" % (ss + k, ss, 4096 * k))
        a.i("s_mul_i32 s%d, s%d, %d" % (sf, sc, 36 * 512))
        a.i("s_lshl_b32 s%d, s%d, 7" % (sf + 1, sd_))
        a.i("s_add_u32 s%d, s%d, s%d" % (sf, sf, sf + 1))
        a.i("s_add_u32 s%d, s%d, 0x%x" % (sf, sf, WS_XD))
        for k in range(1, 5):
            a.i("s_add_u32 s%d, s%d, %d" % (sf + k, sf, 4096 * k))
        vo, vo2, t = VP + 62, VP + 63, VP + 64
        a.i("v_lshrrev_b32 v%d, 3, v1" % vo)
        a.i("v_and_b32 v%d, 3, v%d" % (vo2, vo))
        a.i("v_lshlrev_b32 v%d, 9, v%d" % (vo, vo))
        a.i("v_lshlrev_b32 v%d, 9, v%d" % (vo2, vo2))
        a.i("v_and_b32 v%d, 7, v1" % t)
        a.i("v_lshl_add_u32 v%d, v%d, 4, v%d" % (vo, t, vo))
        a.i("v_lshl_add_u32 v%d, v%d, 4, v%d" % (vo2, t, vo2))
        rs = [VP + 4 * j for j in range(4)]
        rf = [VP + 16 + 4 * j for j in range(5)]

        def issue():
            for j in range(4):
                a.i("buffer_load_dwordx4 %s, v%d, %s, s%d offen sc1" % (vr(rs[j], 4), vo, srd(S_WS), ss + j))
            for j in range(4):
                a.i("buffer_load_dwordx4 %s, v%d, %s, s%d offen sc1" % (vr(rf[j], 4), vo, srd(S_WS), sf + j))
            a.i("buffer_load_dwordx4 %s, v%d, %s, s%d offen sc1" % (vr(rf[4], 4), vo2, srd(S_WS), sf + 4))
        self.stamp(9)
        self.poll(issue, rs + rf, "x3")
        self.stamp(10)
        for e in range(2):
            a.i("v_cndmask_b32 v%d, 0, v%d, s[%d:%d]" % (rf[4] + e, rf[4] + e, S_LO32, S_LO32 + 1))
        for e in range(2):
            for j in range(1, 4):
                a.i("v_add_f32 v%d, v%d, v%d" % (rs[0] + e, rs[0] + e, rs[j] + e))
            for j in range(1, 5):
                a.i("v_add_f32 v%d, v%d, v%d" % (rf[0] + e, rf[0] + e, rf[j] + e))
        for r in (rs[0], rs[0] + 1, rf[0], rf[0] + 1):
            a.i("v_add_f32_dpp v%d, v%d, v%d row_ror:8 row_mask:0xf bank_mask:0xf" % (r, r, r))
            self.allreduce16_32(r, t, "v_add_f32")
        xl, xh = VP + 40, VP + 41
        a.i("v_lshlrev_b32 v%d, 16, v%d" % (xl, vx))
        a.i("v_and_b32 v%d, 0xffff0000, v%d" % (xh, vx))
        for e in range(2):
            s_, f_, x_ = rs[0] + e, rf[0] + e, (xl, xh)[e]
            self.bf16r(s_, s_)
            self.bf16r(f_, f_)
            self.silu(f_, f_, t)
            self.bf16r(f_, f_)
            a.i("v_mul_f32 v%d, v%d, v%d" % (s_, s_, f_))
            self.bf16r(s_, s_)
            a.i("v_add_f32 v%d, v%d, v%d" % (s_, x_, s_))
        a.i("v_cvt_pk_bf16_f32 v%d, v%d, v%d" % (rs[0], rs[0], rs[0] + 1))
        a.i("s_mov_b64 exec, 0xff")
        a.i("buffer_store_dword v%d, v%d, %s, s%d offen" % (rs[0], vxo, srd(S_OUT), sx))
        a.i("s_mov_b64 exec, -1")
        self.stamp(11)
        le = self.L("noep")
        a.i("s_cmp_lg_u32 s%d, 0" % s_r)
        a.branch("s_cbranch_scc1", le)
        a.i("v_mov_b32 v%d, s%d" % (VP + 44, S_T))
        a.i("v_mov_b32 v%d, s%d" % (VP + 45, S_T + 1))
        a.i("v_mov_b32 v%d, 0" % (VP + 46))
        a.i("s_mov_b64 exec, 1")
        a.i("buffer_store_dwordx2 v[%d:%d], v%d, %s, 0 offen offset:%d sc1" % (VP + 44, VP + 45, VP + 46, srd(S_WS), WS_EPOCH))
        a.i("s_mov_b64 exec, -1")
        a.label(le)

    def a_wave(self, gated):
        a = self.a
        WA = self.p["win_a"]
        KV = 8
        VQ = 72
        P = 80
        ACC = 96
        T = 112
        sb = S_TMP
        a.i("s_lshr_b32 s%d, s2, 4" % sb)
        a.i("s_lshl_b32 s%d, s%d, 22" % (sb, sb))
        a.i("s_and_b32 s%d, s2, 15" % (sb + 1))
        a.i("s_lshl_b32 s%d, s%d, 16" % (sb + 1, sb + 1))
        a.i("s_add_u32 s%d, s%d, s%d" % (sb, sb, sb + 1))
        a.i("s_lshl_b32 s%d, s3, 13" % (sb + 1))
        a.i("s_add_u32 s%d, s%d, s%d" % (sb, sb, sb + 1))
        a.i("s_add_u32 s%d, s%d, 0x300000" % (sb, sb))
        a.i("s_add_u32 s%d, s%d, 4096" % (sb + 1, sb))
        vo = T
        a.i("v_lshlrev_b32 v%d, 4, v1" % vo)
        rot = self.p.get("rot", 0)
        if rot:
            a.i("s_mul_i32 s%d, s3, %d" % (sb + 16, rot))
            for n in range(8):
                a.i("s_add_u32 s%d, s%d, %d" % (sb + 8 + n, sb + 16, n))
                a.i("s_and_b32 s%d, s%d, 7" % (sb + 8 + n, sb + 8 + n))
                a.i("s_lshl_b32 s%d, s%d, 10" % (sb + 8 + n, sb + 8 + n))
                a.i("s_add_u32 s%d, s%d, s%d" % (sb + 8 + n, sb + 8 + n, sb))

        def issue(n):
            s_ = S_K if n < 8 else S_V
            j = n & 7
            if rot:
                a.i("buffer_load_dwordx4 %s, v%d, %s, s%d offen nt" % (vr(KV + 4 * n, 4), vo, srd(s_), sb + 8 + j))
            else:
                a.i("buffer_load_dwordx4 %s, v%d, %s, s%d offen offset:%d nt" % (
                    vr(KV + 4 * n, 4), vo, srd(s_), sb + (j >> 2), (j & 3) * 1024))
        nxt = 0
        self.stamp(0)
        for n in range(WA):
            issue(n)
            nxt += 1
        deep = self.p.get("deep", 0) and gated
        if deep:
            full = list(a.vm)
            ldeep = [None] * 17
            for n in range(WA, 16):
                ldeep[n] = self.L("deep")
            lcont = self.L("cont")
            a.i("v_mov_b32 v%d, 0" % (T + 3))
            n = WA
            while n < 16:
                a.i("ds_read_b32 v%d, v%d offset:%d" % (T + 2, T + 3, LF_QREADY))
                a.i("v_readfirstlane_b32 s%d, v%d" % (S_LWT, T + 2))
                a.i("s_cmp_lg_u32 s%d, 0" % S_LWT)
                a.branch("s_cbranch_scc1", ldeep[n])
                a.waitcnt(vm=WA - 1)
                issue(n)
                n += 1
            a.branch("s_branch", lcont)
            a.vm = full
            for n in range(WA, 16):
                a.label(ldeep[n])
                issue(n)
            a.label(lcont)
            nxt = 16
        while nxt < 16:
            a.waitcnt(vm=WA - 1)
            issue(nxt)
            nxt += 1
        if gated:
            self.lds_inc(LF_ISSUE, T + 2)
        self.stamp(1)
        if gated:
            self.lds_wait_ge(LF_QREADY, 1, T + 2, S_LWT)
        self.stamp(2)
        a.i("v_and_b32 v%d, 15, v1" % (T + 2))
        a.i("v_lshlrev_b32 v%d, 4, v%d" % (T + 2, T + 2))
        a.i("ds_read_b128 %s, v%d offset:%d" % (vr(VQ, 4), T + 2, L_Q))
        a.i("ds_read_b128 %s, v%d offset:%d" % (vr(VQ + 4, 4), T + 2, L_Q + 256))

        for j in range(8):
            for h in range(2):
                d = P + 2 * j + h
                a.i("v_dot2_f32_bf16 v%d, v%d, v%d, 0" % (d, KV + 4 * j, VQ + 4 * h))
                for t in range(1, 4):
                    a.i("v_dot2c_f32_bf16 v%d, v%d, v%d" % (d, KV + 4 * j + t, VQ + 4 * h + t))
        for u in range(8):
            A, B = P + u, P + u + 8
            a.i("v_add_f32_dpp v%d, v%d, v%d row_ror:8 row_mask:0xf bank_mask:0x3" % (A, A, A))
            a.i("v_add_f32_dpp v%d, v%d, v%d row_ror:8 row_mask:0xf bank_mask:0xc" % (A, B, B))
        for u in range(4):
            A, B = P + u, P + u + 4
            a.i("v_add_f32_dpp v%d, v%d, v%d row_shl:4 row_mask:0xf bank_mask:0x5" % (A, A, A))
            a.i("v_add_f32_dpp v%d, v%d, v%d row_shr:4 row_mask:0xf bank_mask:0xa" % (A, B, B))
        for u in range(2):
            A, B = P + u, P + u + 2
            a.i("v_add_f32_dpp v%d, v%d, v%d quad_perm:[2,3,0,1] row_mask:0xf bank_mask:0xf" % (A, A, A))
            a.i("v_add_f32_dpp v%d, v%d, v%d quad_perm:[2,3,0,1] row_mask:0xf bank_mask:0xf" % (B, B, B))
            a.i("v_cndmask_b32 v%d, v%d, v%d, s[%d:%d]" % (A, A, B, S_M1, S_M1 + 1))
        A, B = P, P + 1
        a.i("v_add_f32_dpp v%d, v%d, v%d quad_perm:[1,0,3,2] row_mask:0xf bank_mask:0xf" % (A, A, A))
        a.i("v_add_f32_dpp v%d, v%d, v%d quad_perm:[1,0,3,2] row_mask:0xf bank_mask:0xf" % (B, B, B))
        a.i("v_cndmask_b32 v%d, v%d, v%d, s[%d:%d]" % (A, A, B, S_M0, S_M0 + 1))
        s_ = P
        self.bf16r(s_, s_)
        a.i("v_mul_f32 v%d, %s, v%d" % (s_, f32(SCALE), s_))
        self.bf16r(s_, s_)
        m, t = P + 1, P + 2
        a.i("v_max_f32_dpp v%d, v%d, v%d quad_perm:[2,3,0,1] row_mask:0xf bank_mask:0xf" % (m, s_, s_))
        a.i("v_max_f32_dpp v%d, v%d, v%d row_ror:4 row_mask:0xf bank_mask:0xf" % (m, m, m))
        a.i("v_max_f32_dpp v%d, v%d, v%d row_ror:8 row_mask:0xf bank_mask:0xf" % (m, m, m))
        self.allreduce16_32(m, t, "v_max_f32")
        pp = P + 3
        a.i("v_sub_f32 v%d, v%d, v%d" % (pp, s_, m))
        a.i("v_mul_f32 v%d, %s, v%d" % (pp, f32(LOG2E), pp))
        a.i("v_exp_f32 v%d, v%d" % (pp, pp))
        ls = P + 4
        a.i("v_add_f32_dpp v%d, v%d, v%d quad_perm:[2,3,0,1] row_mask:0xf bank_mask:0xf" % (ls, pp, pp))
        a.i("v_add_f32_dpp v%d, v%d, v%d row_ror:4 row_mask:0xf bank_mask:0xf" % (ls, ls, ls))
        a.i("v_add_f32_dpp v%d, v%d, v%d row_ror:8 row_mask:0xf bank_mask:0xf" % (ls, ls, ls))
        self.allreduce16_32(ls, t, "v_add_f32")
        self.get_tag_from_lds(T + 12)
        G0 = T + 16
        for gq in (G0, G0 + 4):
            a.i("v_mov_b32 v%d, s%d" % (gq + 2, S_T))
            a.i("v_mov_b32 v%d, s%d" % (gq + 3, S_T + 1))
        SG = T + 28
        a.i("v_mov_b32 v%d, s%d" % (SG + 2, S_T))
        a.i("v_mov_b32 v%d, s%d" % (SG + 3, S_T + 1))
        go, t3 = T + 24, T + 25
        a.i("v_lshrrev_b32 v%d, 5, v1" % go)
        a.i("v_lshlrev_b32 v%d, 14, v%d" % (go, go))
        a.i("v_and_b32 v%d, 15, v1" % t3)
        a.i("v_lshl_add_u32 v%d, v%d, 6, v%d" % (go, t3, go))
        a.i("v_bfe_u32 v%d, v1, 4, 1" % t3)
        a.i("v_lshl_add_u32 v%d, v%d, 5, v%d" % (go, t3, go))
        gs = T + 26
        a.i("v_lshrrev_b32 v%d, 5, v1" % gs)
        a.i("v_lshlrev_b32 v%d, 8, v%d" % (gs, gs))
        a.i("s_lshr_b32 s%d, s2, 4" % (sb + 4))
        a.i("s_lshl_b32 s%d, s%d, 5" % (sb + 4, sb + 4))
        a.i("s_and_b32 s%d, s2, 15" % (sb + 5))
        a.i("s_add_u32 s%d, s%d, s%d" % (sb + 4, sb + 4, sb + 5))
        a.i("s_lshl_b32 s%d, s%d, 10" % (sb + 5, sb + 4))
        a.i("s_add_u32 s%d, s%d, 0x%x" % (sb + 5, sb + 5, WS_XO))
        a.i("s_lshl_b32 s%d, s%d, 4" % (sb + 6, sb + 4))
        a.i("s_add_u32 s%d, s%d, 0x%x" % (sb + 6, sb + 6, WS_XOS))
        hs = T + 13
        a.i("v_lshrrev_b32 v%d, 5, v1" % hs)
        a.i("v_lshlrev_b32 v%d, 3, v%d" % (hs, hs))
        self.stamp(3)
        ulo, uhi = P + 6, P + 7
        for j in range(8):
            for t4 in range(4):
                vv = KV + 4 * (8 + j) + t4
                a.i("v_lshlrev_b32 v%d, 16, v%d" % (ulo, vv))
                a.i("v_and_b32 v%d, 0xffff0000, v%d" % (uhi, vv))
                for h in range(2):
                    for e, u in ((0, ulo), (1, uhi)):
                        d = ACC + 8 * h + 2 * t4 + e
                        if j == 0:
                            a.i("v_mul_f32_dpp v%d, v%d, v%d row_newbcast:%d row_mask:0xf bank_mask:0xf" % (d, pp, u, 2 * j + h))
                        else:
                            a.i("v_fmac_f32_dpp v%d, v%d, v%d row_newbcast:%d row_mask:0xf bank_mask:0xf" % (d, pp, u, 2 * j + h))
        self.stamp(4)
        for e in range(8):
            a.i("v_permlane32_swap_b32 v%d, v%d" % (ACC + e, ACC + 8 + e))
        for e in range(8):
            a.i("v_add_f32 v%d, v%d, v%d" % (ACC + e, ACC + e, ACC + 8 + e))
        for e in range(4):
            a.i("v_permlane16_swap_b32 v%d, v%d" % (ACC + e, ACC + 4 + e))
        for e in range(4):
            a.i("v_add_f32 v%d, v%d, v%d" % (ACC + e, ACC + e, ACC + 4 + e))
        ad, t2 = T + 4, T + 5
        a.i("v_lshrrev_b32 v%d, 5, v1" % ad)
        a.i("v_lshlrev_b32 v%d, 9, v%d" % (ad, ad))
        a.i("v_and_b32 v%d, 15, v1" % t2)
        a.i("v_lshl_add_u32 v%d, v%d, 5, v%d" % (ad, t2, ad))
        a.i("v_bfe_u32 v%d, v1, 4, 1" % t2)
        a.i("v_lshl_add_u32 v%d, v%d, 4, v%d" % (ad, t2, ad))
        a.i("s_lshl_b32 s%d, s3, 10" % (sb + 2))
        a.i("v_add_u32 v%d, s%d, v%d" % (T + 6, sb + 2, ad))
        a.i("ds_write_b128 v%d, %s offset:%d" % (T + 6, vr(ACC, 4), L_PART))
        a.i("v_mov_b32 v%d, v%d" % (T + 8, m))
        a.i("v_mov_b32 v%d, v%d" % (T + 9, ls))
        a.i("v_lshlrev_b32 v%d, 3, v1" % (T + 7))
        a.i("s_lshl_b32 s%d, s3, 4" % (sb + 2))
        a.i("v_add_u32 v%d, s%d, v%d" % (T + 7, sb + 2, T + 7))
        a.i("s_mov_b64 exec, 3")
        a.i("ds_write_b64 v%d, v[%d:%d] offset:%d" % (T + 7, T + 8, T + 9, L_STATS))
        a.i("s_mov_b64 exec, 1")
        a.waitcnt(lgkm=0)
        a.i("v_mov_b32 v%d, 0" % (T + 10))
        a.i("v_mov_b32 v%d, 1" % (T + 11))
        a.i("ds_add_rtn_u32 v%d, v%d, v%d offset:%d" % (T + 12, T + 10, T + 11, LF_ARRIVE))
        a.i("s_mov_b64 exec, -1")
        a.i("v_readfirstlane_b32 s%d, v%d" % (sb + 2, T + 12))
        self.stamp(5)
        a.i("s_cmp_lg_u32 s%d, 7" % (sb + 2))
        a.branch("s_cbranch_scc1", "L_exit_" + self.kn)
        ST = KV
        for w_ in range(8):
            a.i("ds_read_b64 v[%d:%d], v%d offset:%d" % (ST + 2 * w_, ST + 2 * w_ + 1, hs, L_STATS + 16 * w_))
        PR = KV + 16
        for w_ in range(8):
            a.i("ds_read_b128 %s, v%d offset:%d" % (vr(PR + 4 * w_, 4), ad, L_PART + 1024 * w_))
        M, Ls = T + 14, T + 15
        a.i("v_max3_f32 v%d, v%d, v%d, v%d" % (M, ST, ST + 2, ST + 4))
        a.i("v_max3_f32 v%d, v%d, v%d, v%d" % (M, M, ST + 6, ST + 8))
        a.i("v_max3_f32 v%d, v%d, v%d, v%d" % (M, M, ST + 10, ST + 12))
        a.i("v_max_f32 v%d, v%d, v%d" % (M, M, ST + 14))
        for w_ in range(8):
            r = ST + 2 * w_
            a.i("v_sub_f32 v%d, v%d, v%d" % (r, r, M))
            a.i("v_mul_f32 v%d, %s, v%d" % (r, f32(LOG2E), r))
            a.i("v_exp_f32 v%d, v%d" % (r, r))
        a.i("v_mul_f32 v%d, v%d, v%d" % (Ls, ST, ST + 1))
        for w_ in range(1, 8):
            a.i("v_fmac_f32 v%d, v%d, v%d" % (Ls, ST + 2 * w_, ST + 2 * w_ + 1))
        for k in range(4):
            d = G0 + (k >> 1) * 4 + (k & 1)
            a.i("v_mul_f32 v%d, v%d, v%d" % (d, ST, PR + k))
            for w_ in range(1, 8):
                a.i("v_fmac_f32 v%d, v%d, v%d" % (d, ST + 2 * w_, PR + 4 * w_ + k))
        a.i("v_mov_b32 v%d, v%d" % (SG, M))
        a.i("v_mov_b32 v%d, v%d" % (SG + 1, Ls))
        a.i("buffer_store_dwordx4 %s, v%d, %s, s%d offen sc1" % (vr(G0, 4), go, srd(S_WS), sb + 5))
        a.i("buffer_store_dwordx4 %s, v%d, %s, s%d offen offset:16 sc1" % (vr(G0 + 4, 4), go, srd(S_WS), sb + 5))
        a.i("s_mov_b32 exec_lo, 1")
        a.i("s_mov_b32 exec_hi, 1")
        a.i("buffer_store_dwordx4 %s, v%d, %s, s%d offen sc1" % (vr(SG, 4), gs, srd(S_WS), sb + 6))
        a.i("s_mov_b64 exec, -1")
        if gated:
            a.i("v_mov_b32 v%d, 0" % (T + 2))
            a.i("v_mov_b32 v%d, 1" % (T + 3))
            a.i("ds_write_b32 v%d, v%d offset:%d" % (T + 2, T + 3, LF_ATTDONE))
        self.stamp(6)

    def kernel(self, name, stages, fused):
        a = self.a
        self.kn = name
        self.fused = fused
        self.early_q = "Q" in stages
        a.raw(kernel_header(name))
        a.hist = []
        a.forget_pending()
        self.prologue()
        lt = self.L("twave")
        a.i("s_cmp_ge_u32 s3, 8")
        a.branch("s_cbranch_scc1", lt)
        if "A" in stages:
            self.a_wave(gated=True if ("X" in stages) else False)
        a.branch("s_branch", "L_exit_" + name)
        a.label(lt)
        a.forget_pending()
        sscr = S_SCR
        need_ln = ("Q" in stages) or ("G" in stages)
        gated = fused
        lt1, lt2, lt3 = self.L("t1"), self.L("t2"), self.L("t3")
        a.i("s_cmp_lg_u32 s3, 8")
        a.branch("s_cbranch_scc1", lt1)
        if "Q" in stages:
            a.vm = list(self.t0_vm)
            self.stamp(0)
            self.q_task()
        else:
            ve = self.VP + 60
            self.tag_acquire_issue(ve)
            self.tag_acquire_finish(ve)
            self.scratch_base(sscr)
        if "X" in stages:
            self.x1_control()
        if "E" in stages:
            a.i("s_mov_b32 s%d, s2" % (S_TASK))
            self.e_task(S_TASK, gated)
        a.branch("s_branch", "L_exit_" + name)
        a.label(lt1)
        a.forget_pending()
        self.stamp(0)
        self.scratch_base(sscr)
        if "G" in stages:
            vx = self.VP + 40
            self.ln_issue(vx)
            self.ln_compute(vx, self.VP, sscr)
        a.i("s_cmp_lg_u32 s3, 9")
        a.branch("s_cbranch_scc1", lt2)
        ST2 = S_TMP + 11
        SG2 = S_TMP + 12
        pf = self.p.get("prefetch", 0) and ("G" in stages) and fused
        ed = self.p.get("early_d", 0) and fused
        if ed:
            pf = False
            a.i("s_lshl_b32 s%d, s2, 1" % S_TASK)
            a.i("s_mov_b32 s%d, s2" % ST2)
            self.d_issue(ST2, 80, 163, SG2, False, 164)
            self.g_task(S_TASK, gated)
            self.d_rest(80, 8, 144, SG2, 164)
        elif pf:
            a.i("s_lshl_b32 s%d, s2, 1" % S_TASK)
            a.i("s_mov_b32 s%d, s2" % ST2)
            self.g_task(S_TASK, gated, prefetch=lambda: self.d_issue(ST2, 80, 163, SG2, False, 164))
            self.d_rest(80, 8, 144, SG2, 164)
        else:
            if "G" in stages:
                a.i("s_lshl_b32 s%d, s2, 1" % (S_TASK))
                self.g_task(S_TASK, gated)
            if "D" in stages:
                a.i("s_mov_b32 s%d, s2" % (S_TASK))
                self.d_task(S_TASK, gated)
        a.branch("s_branch", "L_exit_" + name)
        a.label(lt2)
        a.forget_pending()
        a.i("s_cmp_lg_u32 s3, 10")
        a.branch("s_cbranch_scc1", lt3)
        le2, ld2, ln2 = self.L("e2"), self.L("d2"), self.L("n2")
        bias = self.p.get("bias", 0)
        SI = S_TMP + 28
        SL = S_TMP + 29

        def calc_idx():
            if bias:
                a.i("s_lshr_b32 s%d, s2, 3" % SI)
                a.i("s_lshl_b32 s%d, s%d, 2" % (SI, SI))
                a.i("s_and_b32 s%d, s2, 3" % SL)
                a.i("s_or_b32 s%d, s%d, s%d" % (SI, SI, SL))
                a.i("s_and_b32 s%d, s2, 4" % SL)
                a.i("s_cmp_lg_u32 s%d, 0" % SL)
                a.i("s_cselect_b32 s%d, 0x1000, s%d" % (SL, SI))
            else:
                a.i("s_mov_b32 s%d, s2" % SL)
                a.i("s_mov_b32 s%d, s2" % SI)
        calc_idx()
        a.i("s_lshl_b32 s%d, s2, 1" % (S_TASK))
        a.i("s_add_u32 s%d, s%d, 1" % (S_TASK, S_TASK))
        if ed:
            a.i("s_cmp_ge_u32 s%d, 32" % SL)
            a.branch("s_cbranch_scc1", le2)
            a.i("s_add_u32 s%d, s%d, 256" % (ST2, SL))
            self.e_issue(ST2, 80, 163, SG2, False, 164)
            self.g_task(S_TASK, gated)
            self.e_rest(80, 8, 144, SG2, gated, 164)
            a.branch("s_branch", "L_exit_" + name)
            a.label(le2)
            a.forget_pending()
            a.i("s_cmp_ge_u32 s%d, 100" % SL)
            a.branch("s_cbranch_scc1", ld2)
            a.i("s_add_u32 s%d, s%d, %d" % (ST2, SL, 256 - 32))
            self.d_issue(ST2, 80, 163, SG2, False, 164)
            self.g_task(S_TASK, gated)
            self.d_rest(80, 8, 144, SG2, 164)
            a.branch("s_branch", "L_exit_" + name)
            a.label(ld2)
            a.forget_pending()
            self.g_task(S_TASK, gated)
        elif pf:
            a.i("s_cmp_ge_u32 s%d, 32" % SL)
            a.branch("s_cbranch_scc1", le2)
            a.i("s_add_u32 s%d, s%d, 256" % (ST2, SL))
            self.g_task(S_TASK, gated, prefetch=lambda: self.e_issue(ST2, 80, 163, SG2, False, 164))
            self.e_rest(80, 8, 144, SG2, gated, 164)
            a.branch("s_branch", "L_exit_" + name)
            a.label(le2)
            a.forget_pending()
            a.i("s_cmp_ge_u32 s%d, 100" % SL)
            a.branch("s_cbranch_scc1", ld2)
            a.i("s_add_u32 s%d, s%d, %d" % (ST2, SL, 256 - 32))
            self.g_task(S_TASK, gated, prefetch=lambda: self.d_issue(ST2, 80, 163, SG2, False, 164))
            self.d_rest(80, 8, 144, SG2, 164)
            a.branch("s_branch", "L_exit_" + name)
            a.label(ld2)
            a.forget_pending()
            self.g_task(S_TASK, gated)
        else:
            if "G" in stages:
                self.g_task(S_TASK, gated)
            if "E" in stages:
                a.i("s_cmp_ge_u32 s%d, 32" % SL)
                a.branch("s_cbranch_scc1", le2)
                a.i("s_add_u32 s%d, s%d, 256" % (S_TASK, SL))
                self.e_task(S_TASK, gated)
                a.branch("s_branch", "L_exit_" + name)
                a.label(le2)
                a.forget_pending()
            if "D" in stages:
                a.i("s_cmp_lt_u32 s%d, 32" % SL)
                a.branch("s_cbranch_scc1", "L_exit_" + name)
                a.i("s_cmp_ge_u32 s%d, 100" % SL)
                a.branch("s_cbranch_scc1", "L_exit_" + name)
                a.i("s_add_u32 s%d, s%d, %d" % (S_TASK, SL, 256 - 32))
                self.d_task(S_TASK, gated)
        a.branch("s_branch", "L_exit_" + name)
        a.label(lt3)
        a.forget_pending()
        lg3 = self.L("g3")
        g_lo = 64 if bias else 100
        r_lo = 0 if bias else 164
        calc_idx()
        if "G" in stages:
            a.i("s_cmp_lt_u32 s%d, %d" % (SL, g_lo))
            a.branch("s_cbranch_scc1", lg3)
            a.i("s_cmp_ge_u32 s%d, %d" % (SL, g_lo + 64))
            a.branch("s_cbranch_scc1", lg3)
            a.i("s_add_u32 s%d, s%d, %d" % (S_TASK, SL, 512 - g_lo))
            self.g_task(S_TASK, gated)
            a.branch("s_branch", "L_exit_" + name)
            a.label(lg3)
            a.forget_pending()
            if gated:
                self.lds_inc(LF_GISSUED, 164)
        if "R" in stages:
            if bias:
                a.i("s_cmp_lg_u32 s%d, 0x1000" % SL)
                a.branch("s_cbranch_scc1", "L_exit_" + name)
            a.i("s_cmp_lt_u32 s%d, %d" % (SI, r_lo))
            a.branch("s_cbranch_scc1", "L_exit_" + name)
            a.i("s_cmp_ge_u32 s%d, %d" % (SI, r_lo + 36))
            a.branch("s_cbranch_scc1", "L_exit_" + name)
            a.i("s_sub_u32 s%d, s%d, %d" % (S_TASK, SI, r_lo))
            self.r_task(S_TASK, gated)
        a.label("L_exit_" + name)
        a.forget_pending()
        if self.p.get("instr"):
            a.i("s_mul_i32 s96, s2, %d" % NWAVES)
            a.i("s_add_u32 s96, s96, s3")
            a.i("s_lshl_b32 s96, s96, 8")
            a.i("s_add_u32 s96, s96, 0x%x" % WS_STAMP)
            a.i("v_lshlrev_b32 v166, 2, v1")
            a.i("buffer_store_dword v167, v166, %s, s96 offen" % srd(S_WS))
        a.label("L_end_" + name)
        a.endpgm()


DEFAULT_PARAMS = dict(win_a=4, win_g=None, rot=1, prefetch=0, spin_lds=0x400000, spin_glb=0x40000)


def build(mode, params=None, out=None):
    p = dict(DEFAULT_PARAMS)
    if params:
        p.update(params)
    g = Gen(p)
    a = g.a
    if mode == "fused":
        kernels = [(KNAME + "_kernel", set("QGXADER"), True)]
    else:
        kernels = [("k1_kernel", set("QG"), False), ("k2_kernel", set("XAD"), False),
                   ("k3_kernel", set("E"), False), ("k4_kernel", set("R"), False)]
    a.raw("; launch's hand-offs from older ones).  All spin loops are bounded.  Generated by gen/gen_fused.py")
    if mode == "fused":
        a.raw("; @launch grid=(256,1,1) block=(%d,1,1) lds=%d" % (NWAVES * 64, LDS_BYTES))
    else:
        for (n, _, _) in kernels:
            a.raw("; @launch kernel=%s grid=(256,1,1) block=(%d,1,1) lds=%d" % (n, NWAVES * 64, LDS_BYTES))
    a.raw('.amdgcn_target "amdgcn-amd-amdhsa--gfx950"')
    a.raw(".text")
    for (n, st, fz) in kernels:
        g.kernel(n, st, fz)
    a.raw('.section .rodata,"a"')
    for (n, _, _) in kernels:
        a.raw(".p2align 6")
        a.raw(kernel_descriptor(n, 168, 102))
    txt = a.text()
    if out:
        open(out, "w").write(txt)
    return txt, a


if __name__ == "__main__":
    mode = sys.argv[1]
    out = sys.argv[2]
    params = {}
    for kv in sys.argv[3:]:
        k, v = kv.split("=")
        params[k] = None if v == "None" else int(v, 0)
    txt, a = build(mode, params, out)
    print("instructions:", a.n_ins, "stats:", a.stats)
```
